```python
import torch

def _softmax(x, axis=-1):
    return torch.softmax(x, dim=axis)
def _gelu(x):
    return torch.nn.functional.gelu(x, approximate="tanh")
def _silu(x):
    return torch.nn.functional.silu(x)
def _sigmoid(x):
    return torch.sigmoid(x)
def _layernorm(x, axis=-1, eps=1e-5):
    m = x.mean(dim=axis, keepdim=True)
    v = x.var(dim=axis, keepdim=True, unbiased=False)
    return (x - m) / torch.sqrt(v + eps)
def _scatter_add(tgt, idx, src, axis=0):
    return tgt.clone().index_add_(axis, idx, src)
def _segment_sum(src, seg, n):
    out = torch.zeros((n,) + src.shape[1:], dtype=src.dtype)
    return out.index_add_(0, seg, src)
def _pad(x, pw):
    flat = tuple(v for pair in reversed(pw) for v in pair)
    return torch.nn.functional.pad(x, flat)

kernel_name = 'recurrent_scan__mha_block__moe_arch_mod__prompt'

def setup_inputs():

    _w = (lambda a: (lambda t: t.to(torch.bfloat16) if t.is_floating_point() else t)(torch.as_tensor(a)))
    def _A_setup():
        B, S, D, H = 1, 2048, 512, 32
        return {
            "x": _w((lambda *s: torch.randn(*s, dtype=torch.bfloat16) * 0.05)(B, S, D)),
            "wqkv": _w((lambda *s: torch.randn(*s, dtype=torch.bfloat16) * 0.05)(D, 3 * D)),
            "wo": _w((lambda *s: torch.randn(*s, dtype=torch.bfloat16) * 0.05)(D, D)),
        }
    _A_in = _A_setup()

    def _B_setup():
        B, S, D, F, C = 1, 2048, 512, 1792, 8
        return {
            "x": _w((lambda *s: torch.randn(*s, dtype=torch.bfloat16) * 0.05)(B, S, D)),
            "w_r": _w((lambda *s: torch.randn(*s, dtype=torch.bfloat16) * 0.05)(D)),
            "w_gate": _w((lambda *s: torch.randn(*s, dtype=torch.bfloat16) * 0.05)(D, F)),
            "w_up": _w((lambda *s: torch.randn(*s, dtype=torch.bfloat16) * 0.05)(D, F)),
            "w_down": _w((lambda *s: torch.randn(*s, dtype=torch.bfloat16) * 0.05)(F, D)),
        }
    _B_in = _B_setup()

    return {
        "A_x": _A_in["x"],
        "A_wqkv": _A_in["wqkv"],
        "A_wo": _A_in["wo"],
        "B_x": _B_in["x"],
        "B_w_r": _B_in["w_r"],
        "B_w_gate": _B_in["w_gate"],
        "B_w_up": _B_in["w_up"],
        "B_w_down": _B_in["w_down"],
    }

def reference(A_x, A_wqkv, A_wo, B_x, B_w_r, B_w_gate, B_w_up, B_w_down):
    def _A_ref(x, wqkv, wo):
        B, S, D = x.shape
        H = 32
        Dh = D // H
        qkv = (lambda x, *d: x.permute(*d))((x @ wqkv).reshape(B, S, 3, H, Dh), 2, 0, 3, 1, 4)
        q, k, v = qkv[0], qkv[1], qkv[2]
        scores = torch.einsum("bhqd,bhkd->bhqk", q, k) * (Dh ** -0.5)
        p = _softmax(scores, axis=-1)
        o = torch.einsum("bhqk,bhkd->bhqd", p, v)
        return (lambda x, *d: x.permute(*d))(o, 0, 2, 1, 3).reshape(B, S, D) @ wo

    def _B_ref(x, w_r, w_gate, w_up, w_down):
        B, S, D = x.shape
        C = 8
        r = x @ w_r
        idx = torch.argsort(-r, axis=-1)[:, :C]
        idx_e = (lambda x, n, axis: torch.repeat_interleave(x, n, dim=axis))(idx.reshape(B, C, 1), D, axis=2)
        x_sel = (lambda x, i, axis: torch.take_along_dim(x, i, dim=axis))(x, idx_e, axis=1)
        g = _silu(x_sel @ w_gate)
        u = x_sel @ w_up
        y = (g * u) @ w_down
        r_sel = _sigmoid((lambda x, i, axis: torch.take_along_dim(x, i, dim=axis))(r, idx, axis=1))
        y = y * r_sel.reshape(B, C, 1)
        b_off = (torch.arange(B) * S).reshape(B, 1)
        flat_idx = (idx + b_off).reshape(B * C)
        zero = (x * 0.0).reshape(B * S, D)
        upd = _scatter_add(zero, flat_idx, y.reshape(B * C, D), axis=0)
        return x + upd.reshape(B, S, D)

    x = A_x
    xn = _layernorm(x, axis=-1)
    s = _A_ref(xn, A_wqkv, A_wo)
    g = _silu(_B_ref(xn, B_w_r, B_w_gate, B_w_up, B_w_down))
    return x + s * g
```

```python
import re

TRANS = ('v_exp_', 'v_log_', 'v_rcp_', 'v_rsq_', 'v_sqrt_', 'v_sin_', 'v_cos_')
REG_RE = re.compile(r'^(-|abs\()?([vsa])(\d+)\)?$')
RNG_RE = re.compile(r'^(-)?([vsa])\[(\d+):(\d+)\]$')


def regs_of(op):
    op = op.strip()
    m = REG_RE.match(op)
    if m:
        return {(m.group(2), int(m.group(3)))}
    m = RNG_RE.match(op)
    if m:
        return {(m.group(2), i) for i in range(int(m.group(3)), int(m.group(4)) + 1)}
    if op == 'vcc':
        return {('s', 'vcc_lo'), ('s', 'vcc_hi')}
    if op in ('vcc_lo', 'vcc_hi'):
        return {('s', op)}
    if op == 'exec':
        return {('x', 'exec')}
    if op == 'm0':
        return {('m', 'm0')}
    return set()


class Ins:
    def __init__(self, text):
        self.text = text
        t = text.split(';')[0].strip()
        self.label = t.endswith(':')
        self.directive = t.startswith('.')
        self.mn = '' if (self.label or self.directive or not t) else t.split()[0]
        self.ops = []
        self.dst = set()
        self.src = set()
        self.srcC = set()
        self.srcAB = set()
        if not self.mn:
            return
        rest = t[len(self.mn):].strip()
        ops, depth, cur = [], 0, ''
        for ch in rest:
            if ch == '[':
                depth += 1
            if ch == ']':
                depth -= 1
            if ch == ',' and depth == 0:
                ops.append(cur.strip())
                cur = ''
            else:
                cur += ch
        if cur.strip():
            ops.append(cur.strip())
        self.mods = ''
        if ops:
            parts = ops[-1].split()
            ops[-1] = parts[0]
            self.mods = ' '.join(parts[1:])
        self.ops = ops
        mn = self.mn
        self.is_mfma = mn.startswith('v_mfma') or mn.startswith('v_smfmac')
        self.is_valu = mn.startswith('v_') and not self.is_mfma
        self.is_trans = mn.startswith(TRANS)
        self.is_dot = mn.startswith('v_dot')
        self.is_dpp = '_dpp' in mn or 'quad_perm' in self.mods or 'row_' in self.mods
        self.is_perml = mn.startswith('v_permlane')
        self.is_rdlane = mn.startswith('v_readlane') or mn.startswith('v_readfirstlane')
        self.is_ds = mn.startswith('ds_')
        self.is_vmem = mn.startswith(('buffer_', 'global_', 'flat_'))
        self.is_salu = mn.startswith('s_')
        self.is_lds_dma = self.is_vmem and (' lds' in (' ' + self.mods) or 'load_lds' in mn)
        R = [regs_of(o) for o in ops]
        if self.is_mfma:
            self.dst = R[0]
            self.srcAB = R[1] | R[2]
            self.srcC = R[3] if len(R) > 3 else set()
            self.src = self.srcAB | self.srcC
            if '32x32' in mn:
                self.passes = 8
            elif '16x16' in mn:
                self.passes = 4
            else:
                self.passes = 2
        elif self.is_valu:
            if mn.startswith('v_nop'):
                return
            self.dst = set(R[0])
            k = 1
            if '_co_' in mn or mn.startswith(('v_div_scale', 'v_mad_u64', 'v_mad_i64')):
                self.dst |= R[1]
                k = 2
            for r in R[k:]:
                self.src |= r
            if mn.startswith(('v_fmac', 'v_mac', 'v_dot2c', 'v_writelane')) or self.is_dpp or 'sdwa' in mn:
                self.src |= R[0]
            if self.is_perml:
                self.dst |= R[1]
                self.src |= R[0]
        elif self.is_ds:
            if mn.startswith(('ds_read', 'ds_bpermute', 'ds_permute', 'ds_swizzle')) or '_rtn' in mn:
                self.dst = R[0]
                for r in R[1:]:
                    self.src |= r
            else:
                for r in R:
                    self.src |= r
        elif self.is_vmem:
            if mn in ('buffer_wbl2', 'buffer_inv'):
                return
            isload = 'load' in mn
            if isload and not self.is_lds_dma:
                self.dst = R[0]
                for r in R[1:]:
                    self.src |= r
            else:
                for r in R:
                    self.src |= r
            self.store_data = set()
            if 'store' in mn and ('x3' in mn or 'x4' in mn):
                self.store_data = R[0] if mn.startswith('buffer_') else R[1]
        elif self.is_salu:
            if mn.startswith(('s_cmp', 's_waitcnt', 's_nop', 's_barrier', 's_branch', 's_cbranch', 's_endpgm',
                              's_setprio', 's_sleep', 's_bitcmp', 's_setpc')):
                for r in R:
                    self.src |= r
            else:
                self.dst = R[0] if R else set()
                for r in R[1:]:
                    self.src |= r

    def states(self):
        if not self.mn:
            return 0
        if self.mn == 's_nop':
            return int(self.ops[0], 0) + 1
        return 1


def need(prev, cur):
    n = 0
    if not prev.mn or not cur.mn:
        return 0
    vd = {r for r in prev.dst if r[0] in 'va'}
    sd = {r for r in prev.dst if r[0] == 's'}
    if prev.is_valu:
        if cur.is_mfma and vd & cur.src:
            n = max(n, 2)
        if cur.is_valu:
            if prev.is_trans and not cur.is_trans and vd & cur.src:
                n = max(n, 1)
            if (cur.is_dpp or cur.is_perml) and vd & cur.src:
                n = max(n, 2)
            if cur.is_rdlane and vd & cur.src:
                n = max(n, 1)
            if sd & cur.src:
                n = max(n, 4 if cur.is_rdlane or cur.mn.startswith('v_writelane') else 2)
            if prev.is_dot and vd & (cur.src | cur.dst):
                same = prev.mn == cur.mn
                onlyC = same and not (vd & (regs_of(cur.ops[1]) | regs_of(cur.ops[2])))
                if not onlyC:
                    n = max(n, 3)
        if prev.is_dot and (cur.is_ds or cur.is_vmem or cur.is_mfma) and vd & cur.src:
            n = max(n, 3)
        if cur.is_vmem and sd & cur.src:
            n = max(n, 5)
    if prev.is_mfma:
        big = {8: 12, 4: 8, 2: 5}[prev.passes]
        if cur.is_mfma:
            if vd & cur.srcAB:
                n = max(n, big)
            if vd & cur.srcC:
                if cur.srcC == vd and cur.passes == prev.passes:
                    n = max(n, 2 if prev.passes == 2 else 0)
                else:
                    n = max(n, {8: 10, 4: 6, 2: 4}[prev.passes])
            elif vd & cur.dst:
                n = max(n, {8: 10, 4: 6, 2: 4}[prev.passes])
        elif cur.is_valu or cur.is_ds or cur.is_vmem:
            if vd & (cur.src | cur.dst):
                n = max(n, big)
            if cur.is_valu and prev.srcC & cur.dst:
                n = max(n, {8: 7, 4: 3, 2: 1}[prev.passes])
    if prev.is_salu and ('m', 'm0') in prev.dst and cur.is_vmem and cur.is_lds_dma:
        n = max(n, 1)
    if prev.is_vmem and getattr(prev, 'store_data', None):
        if prev.store_data & cur.dst:
            n = max(n, 2 if cur.is_valu else 1)
    return n


MAXD = 12


class Asm:
    def __init__(self):
        self.ins = []
        self.nlab = 0

    def __call__(self, text):
        for line in text.split('\n'):
            line = line.strip()
            if not line:
                continue
            self.emit(line)

    def emit(self, line):
        cur = Ins(line)
        if cur.mn:
            pad = self._pad(self.ins, cur)
            while pad > 0:
                k = min(pad, 16)
                self.ins.append(Ins('s_nop %d' % (k - 1)))
                pad -= k
        self.ins.append(cur)

    @staticmethod
    def _pad(hist, cur):
        dist = 0
        pad = 0
        for p in reversed(hist):
            if p.mn == 's_endpgm' or p.mn == 's_branch' or p.mn == 's_setpc_b64':
                break
            n = need(p, cur)
            if n > dist:
                pad = max(pad, n - dist)
            dist += p.states()
            if dist >= MAXD:
                break
        return pad

    def label(self, name):
        self.ins.append(Ins(name + ':'))

    def newlabel(self, base='L'):
        self.nlab += 1
        return '%s_%d' % (base, self.nlab)

    def check_branches(self):
        pos = {}
        for i, x in enumerate(self.ins):
            if x.label:
                pos[x.text.split(':')[0].strip()] = i
        problems = []
        for i, x in enumerate(self.ins):
            if x.mn.startswith('s_cbranch') or x.mn == 's_branch':
                tgt = pos[x.ops[0]]
                hist = list(self.ins[max(0, i - 40):i]) + [Ins('s_nop 0')]
                d = 0
                for y in self.ins[tgt:tgt + 40]:
                    if y.mn:
                        pad = self._pad(hist, y)
                        if pad > 0:
                            problems.append((x.text, y.text, pad))
                        hist.append(y)
                        d += y.states()
                        if d >= MAXD or y.mn in ('s_branch', 's_endpgm'):
                            break
        return problems

    def text(self):
        out = []
        for x in self.ins:
            if x.label or x.directive:
                out.append(x.text)
            else:
                out.append('    ' + x.text)
        return '\n'.join(out) + '\n'


def vr(a, n=1):
    return 'v%d' % a if n == 1 else 'v[%d:%d]' % (a, a + n - 1)


def sr(a, n=1):
    return 's%d' % a if n == 1 else 's[%d:%d]' % (a, a + n - 1)
```

```python
from asmlib import *

NAME = 'recurrent_scan__mha_block__moe_arch_mod__prompt'
QF = 0x000000
KV = 0x200000
OF = 0x600000
XN = 0x800000
KEY = 0xA00000
KNORM = 0xA04000
SEL = 0xA06000
HB = 0xA08000
GSEL = 0xA10000
WS_USED = 0xC00000
ONES_BF = 0x3f803f80
QSCALE = 0.25 * 1.4426950408889634
NLOG2E = -1.4426950408889634


def f2u(x):
    import struct
    return '0x%08x' % struct.unpack('<I', struct.pack('<f', x))[0]


def code_prefetch(a, vtmp, vdst, stmp, tid='v0', end='code_end', stride_log2=7):
    lab = a.newlabel('pf')
    a('s_getpc_b64 %s' % sr(stmp, 2))
    a.label(lab)
    a('v_lshlrev_b32 %s, %d, %s' % (vtmp, stride_log2, tid))
    a('v_min_u32 %s, %s-%s-4, %s' % (vtmp, end, lab, vtmp))
    a('global_load_dword %s, %s, %s' % (vdst, vtmp, sr(stmp, 2)))


def wave_reduce(a, regs, op='v_add_f32'):
    steps = ['quad_perm:[1,0,3,2] row_mask:0xf bank_mask:0xf',
             'quad_perm:[2,3,0,1] row_mask:0xf bank_mask:0xf',
             'row_half_mirror row_mask:0xf bank_mask:0xf',
             'row_mirror row_mask:0xf bank_mask:0xf',
             'row_bcast:15 row_mask:0xa bank_mask:0xf',
             'row_bcast:31 row_mask:0xc bank_mask:0xf']
    for s in steps:
        for r in regs:
            a('%s_dpp %s, %s, %s %s' % (op, r, r, r, s))


def bf16r(a, dst, src, tmp=None):
    a('v_cvt_pk_bf16_f32 %s, %s, %s' % (dst, src, src))
    a('v_and_b32 %s, 0xffff0000, %s' % (dst, dst))


def kernel_header(name):
    return ('.globl %s\n.p2align 8\n.type %s,@function\n%s:\n' % (name, name, name))


def kernel_desc(name, vgpr, sgpr=102):
    acc = (vgpr + 3) // 4 * 4
    return ('.amdhsa_kernel %s\n  .amdhsa_next_free_vgpr %d\n  .amdhsa_next_free_sgpr %d\n  .amdhsa_accum_offset %d\n'
            '  .amdhsa_group_segment_fixed_size 0\n  .amdhsa_kernarg_size 88\n  .amdhsa_user_sgpr_count 2\n'
            '  .amdhsa_user_sgpr_kernarg_segment_ptr 1\n  .amdhsa_system_sgpr_workgroup_id_x 1\n'
            '  .amdhsa_float_denorm_mode_32 3\n.end_amdhsa_kernel\n' % (name, vgpr, sgpr, acc))


STAMP = 0xB00000
NST = 12
def stamp(a, opt, idx):
    if not opt.get('stamp'):
        return
    a('s_memtime %s' % sr(64 + 2 * idx, 2))
    a('s_waitcnt lgkmcnt(0)')


def stamp_rt(a, opt, idx):
    if not opt.get('stamp'):
        return
    a('s_memrealtime %s' % sr(64 + 2 * idx, 2))
    a('s_waitcnt lgkmcnt(0)')


def stamp_flush(a, opt, kern, srd, swave, nw):
    if not opt.get('stamp'):
        return
    a('s_mul_i32 s90, s2, %d' % nw)
    a('s_add_u32 s90, s90, %s' % swave)
    a('s_lshl_b32 s90, s90, 6')
    a('s_add_u32 s90, s90, 0x%x' % (STAMP + kern * 0x40000))
    a('s_mov_b64 exec, 1')
    a('v_mov_b32 v1, 0')
    for i in range(NST):
        a('v_mov_b32 v2, s%d' % (64 + 2 * i))
        a('buffer_store_dword v2, v1, %s, s90 offen offset:%d' % (srd, 4 * i))
        a('s_nop 1')
```

```python
from common import *

LDS_W = 65536
LDS_CS = 0
LDS_RS = 1536
K1_LDS = 114688

AF = 16
WF = [32, 44]
SELR = 56
ST = 60
ACC = 64
CS = 112
VAB, VAC, VWB, VWC = 124, 128, 132, 136
VDA0, VDA1, VDW = 140, 141, 142
VL = 145
XA, XB, WR = 148, 152, 156
FA, FB = 160, 168
XNA, XNB = 176, 180
KEYV = 184
T = 186
RSV = 200
PK = 216
K1_VGPR = 232


def dma_chunk(a, sc, opt):
    a('s_add_u32 s26, %s, s21' % sc)
    a('s_and_b32 s26, s26, 7')
    a('s_and_b32 s27, %s, 3' % sc)
    a('s_mul_i32 s28, s26, %d' % (64 * 3072))
    a('s_add_u32 s28, s28, s23')
    a('s_mul_i32 s29, s27, 12288')
    a('s_add_u32 s29, s29, s33')
    a('s_lshl_b32 s30, s26, 7')
    a('s_add_u32 s30, s30, s22')
    a('s_lshl_b32 s31, s27, 14')
    a('s_add_u32 s31, s31, s32')
    for t in range(3):
        if t == 0:
            a('s_mov_b32 m0, s29')
        else:
            a('s_add_u32 m0, s29, %d' % (t * 1024))
        a('buffer_load_dwordx4 v%d, s[8:11], s28 offen lds' % (VDW + t))
    for t in range(4):
        if t == 0:
            a('s_mov_b32 m0, s31')
        else:
            a('s_add_u32 m0, s31, %d' % (t * 1024))
            a('s_add_u32 s30, s30, 8192')
        a('buffer_load_dwordx4 v%d, s[4:7], s30 offen lds' % (VDA0 + (t & 1)))


def wreads(a, tp, st):
    for ct in range(3):
        for j4 in range(2):
            a('ds_read_b64_tr_b16 %s, v%d offset:%d' % (vr(WF[st] + ct * 4 + j4 * 2, 2), VWC + tp, j4 * 768 + ct * 64))


def mainloop(a, orient, tag):
    top = 'k1_loop_' + tag
    a.label(top)
    a('s_barrier')
    wreads(a, 0, 0)
    skip = a.newlabel('k1_nodma')
    a('s_add_u32 s25, s24, 3')
    a('s_cmp_ge_u32 s25, 8')
    a('s_cbranch_scc1 %s' % skip)
    dma_chunk(a, 's25', None)
    a.label(skip)
    a('s_waitcnt lgkmcnt(6)')
    k = 0
    for tp in range(4):
        for i in range(4):
            r = AF + tp * 4 + i
            a('v_dot2c_f32_bf16 v%d, s34, v%d' % (ST + 2 * (k & 1), r))
            a('v_dot2c_f32_bf16 v%d, v%d, v%d' % (ST + 1 + 2 * (k & 1), r, r))
            k += 1
        if tp == 1:
            wreads(a, 1, 1)

    def mf(tp, ct):
        st = tp & 1
        w = vr(WF[st] + ct * 4, 4)
        x = vr(AF + tp * 4, 4)
        d = vr(ACC + ct * 16, 16)
        if orient[ct] == 'N':
            a('v_mfma_f32_32x32x16_bf16 %s, %s, %s, %s' % (d, w, x, d))
        else:
            a('v_mfma_f32_32x32x16_bf16 %s, %s, %s, %s' % (d, x, w, d))

    a('s_waitcnt lgkmcnt(6)')
    for ct in range(3):
        mf(0, ct)
    for ct in range(3):
        a('v_mfma_f32_16x16x32_bf16 %s, %s, %s, %s' % (vr(CS + ct * 4, 4), vr(SELR, 4), vr(WF[0] + ct * 4, 4), vr(CS + ct * 4, 4)))
    wreads(a, 2, 0)
    a('s_waitcnt lgkmcnt(6)')
    for ct in range(3):
        mf(1, ct)
    wreads(a, 3, 1)
    a('s_waitcnt lgkmcnt(6)')
    for ct in range(3):
        mf(2, ct)
    a('s_add_u32 s24, s24, 1')
    a('s_and_b32 s27, s24, 3')
    a('s_lshl_b32 s28, s27, 14')
    a('s_mul_i32 s29, s27, 12288')
    for tp in range(4):
        a('v_add_u32 v%d, s28, v%d' % (VAC + tp, VAB + tp))
    a('s_waitcnt lgkmcnt(0)')
    for ct in range(3):
        mf(3, ct)
    for tp in range(4):
        a('v_add_u32 v%d, s29, v%d' % (VWC + tp, VWB + tp))
    l7, l0, lgo = a.newlabel('k1_w7'), a.newlabel('k1_w0'), a.newlabel('k1_go')
    a('s_cmp_ge_u32 s24, 6')
    a('s_cbranch_scc1 %s' % l7)
    a('s_waitcnt vmcnt(14)')
    a.label(lgo)
    for tp in range(4):
        a('ds_read_b128 %s, v%d' % (vr(AF + tp * 4, 4), VAC + tp))
    a('s_branch %s' % top)
    a.label(l7)
    a('s_cmp_ge_u32 s24, 7')
    a('s_cbranch_scc1 %s' % l0)
    a('s_waitcnt vmcnt(7)')
    a('s_branch %s' % lgo)
    a.label(l0)
    a('s_waitcnt vmcnt(0)')
    a('s_cmp_lt_u32 s24, 8')
    a('s_cbranch_scc1 %s' % lgo)
    a('s_branch k1_post')


def row_ln(a, x, f, xn, sm, t0):
    pass


def gen_k1(a, opt):
    a('s_cmp_ge_u32 s2, 256')
    a('s_cbranch_scc1 k1_end')
    stamp(a, opt, 0)
    stamp_rt(a, opt, 10)
    a('s_load_dwordx2 s[4:5], s[0:1], 0')
    a('s_load_dwordx2 s[8:9], s[0:1], 8')
    a('s_load_dwordx2 s[16:17], s[0:1], 32')
    a('s_load_dwordx2 s[12:13], s[0:1], 80')
    code_prefetch(a, 'v1', 'v2', 36)
    a('v_lshrrev_b32 v3, 6, v0')
    a('v_and_b32 v%d, 63, v0' % VL)
    a('v_readfirstlane_b32 s18, v3')
    a('s_mov_b32 s6, 0x200000')
    a('s_mov_b32 s7, 0x20000')
    a('s_mov_b32 s10, %d' % (512 * 3072))
    a('s_mov_b32 s11, 0x20000')
    a('s_mov_b32 s14, 0x%x' % WS_USED)
    a('s_mov_b32 s15, 0x20000')
    a('s_mov_b32 s34, 0x%x' % ONES_BF)
    a('s_and_b32 s25, s2, 7')
    a('s_lshr_b32 s26, s2, 3')
    a('s_lshr_b32 s19, s25, 1')
    a('s_lshl_b32 s19, s19, 2')
    a('s_and_b32 s27, s26, 3')
    a('s_add_u32 s19, s19, s27')
    a('s_and_b32 s20, s25, 1')
    a('s_lshl_b32 s20, s20, 3')
    a('s_lshr_b32 s27, s26, 2')
    a('s_add_u32 s20, s20, s27')
    if opt.get('k1rot', 1) == 1:
        a('s_lshl_b32 s21, s19, 1')
        a('s_add_u32 s21, s21, s20')
    elif opt.get('k1rot') == 2:
        a('s_xor_b32 s21, s19, s20')
        a('s_and_b32 s21, s21, 1')
        a('s_lshl_b32 s21, s21, 2')
    else:
        a('s_mov_b32 s21, 0')
    a('s_lshl_b32 s35, s19, 2')
    a('s_add_u32 s35, s35, s18')
    a('s_lshl_b32 s22, s35, 15')
    a('s_mul_i32 s23, s18, %d' % (16 * 3072))
    a('s_mul_i32 s27, s20, 192')
    a('s_add_u32 s23, s23, s27')
    a('s_lshl_b32 s32, s18, 12')
    a('s_mul_i32 s33, s18, 3072')
    a('s_add_u32 s33, s33, %d' % LDS_W)
    a('s_lshl_b32 s38, s19, 7')
    a('s_lshl_b32 s27, s20, 3')
    a('s_add_u32 s38, s38, s27')
    a('s_lshl_b32 s27, s18, 1')
    a('s_add_u32 s38, s38, s27')
    a('s_lshl_b32 s39, s38, 10')
    l = 'v%d' % VL
    a('v_lshlrev_b32 v4, 4, %s' % l)
    a('v_lshrrev_b32 v5, 3, %s' % l)
    a('v_lshrrev_b32 v6, 4, %s' % l)
    a('v_and_b32 v7, 7, %s' % l)
    a('v_xor_b32 v7, v7, v6')
    a('v_lshlrev_b32 v7, 4, v7')
    a('v_lshl_add_u32 v%d, v5, 10, v7' % VDA0)
    a('v_xor_b32 v%d, 64, v%d' % (VDA1, VDA0))
    a('s_movk_i32 s27, 0xaab')
    a('s_movk_i32 s28, %d' % (3072 - 192))
    for t in range(3):
        a('v_add_u32 v8, %d, %s' % (64 * t, l))
        a('v_mul_u32_u24 v9, s27, v8')
        a('v_lshrrev_b32 v9, 15, v9')
        a('v_lshlrev_b32 v8, 4, v8')
        a('v_mad_u32_u24 v%d, v9, s28, v8' % (VDW + t))
    a('s_waitcnt lgkmcnt(0)')
    stamp(a, opt, 1)
    a('s_add_u32 s40, s39, 1024')
    a('buffer_load_dwordx4 %s, v4, s[4:7], s39 offen' % vr(XA, 4))
    a('buffer_load_dwordx4 %s, v4, s[4:7], s40 offen' % vr(XB, 4))
    a('global_load_dwordx4 %s, v4, s[16:17]' % vr(WR, 4))
    for c in range(3):
        a('s_mov_b32 s25, %d' % c)
        dma_chunk(a, 's25', opt)
    a('v_and_b32 v8, 31, %s' % l)
    a('v_lshrrev_b32 v9, 5, %s' % l)
    a('v_bfe_u32 v10, %s, 1, 3' % l)
    a('v_xor_b32 v10, v10, v9')
    a('v_lshlrev_b32 v11, 7, v8')
    a('v_add_u32 v11, s32, v11')
    a('v_bfe_u32 v12, %s, 2, 2' % l)
    a('v_lshl_add_u32 v12, v9, 3, v12')
    a('v_mul_u32_u24 v12, 192, v12')
    a('v_and_b32 v13, 16, %s' % l)
    a('v_lshl_add_u32 v12, v13, 1, v12')
    a('v_and_b32 v13, 3, %s' % l)
    a('v_lshl_add_u32 v12, v13, 3, v12')
    for tp in range(4):
        a('s_add_u32 s27, s18, %d' % tp)
        a('s_and_b32 s27, s27, 3')
        a('s_lshl_b32 s28, s27, 1')
        a('s_mul_i32 s29, s27, 3072')
        a('s_add_u32 s29, s29, %d' % LDS_W)
        a('v_xor_b32 v13, s28, v10')
        a('v_lshl_add_u32 v%d, v13, 4, v11' % (VAB + tp))
        a('v_add_u32 v%d, s29, v12' % (VWB + tp))
        a('v_mov_b32 v%d, v%d' % (VAC + tp, VAB + tp))
        a('v_mov_b32 v%d, v%d' % (VWC + tp, VWB + tp))
    a('v_and_b32 v13, 15, %s' % l)
    a('v_and_b32 v14, 1, v6')
    a('v_cmp_eq_u32 vcc, v13, v14')
    a('v_mov_b32 v13, s34')
    for i in range(4):
        a('v_cndmask_b32 v%d, 0, v13, vcc' % (SELR + i))
    for i in range(48):
        a('v_mov_b32 v%d, 0' % (ACC + i))
    for i in range(12):
        a('v_mov_b32 v%d, 0' % (CS + i))
    for i in range(4):
        a('v_mov_b32 v%d, 0' % (ST + i))
    sa, sb = 'v%d' % T, 'v%d' % (T + 1)
    a('v_mov_b32 %s, 0' % sa)
    a('v_mov_b32 %s, 0' % sb)
    stamp(a, opt, 2)
    a('s_waitcnt vmcnt(21)')
    stamp(a, opt, 3)
    for i in range(4):
        a('v_dot2c_f32_bf16 %s, s34, v%d' % (sa, XA + i))
        a('v_dot2c_f32_bf16 %s, s34, v%d' % (sb, XB + i))
    for (x, f) in ((XA, FA), (XB, FB)):
        for i in range(4):
            a('v_lshlrev_b32 v%d, 16, v%d' % (f + 2 * i, x + i))
            a('v_and_b32 v%d, 0xffff0000, v%d' % (f + 2 * i + 1, x + i))
    wave_reduce(a, [sa, sb])
    a('v_readlane_b32 s41, %s, 63' % sa)
    a('v_readlane_b32 s42, %s, 63' % sb)
    ma, mb = 'v%d' % (T + 2), 'v%d' % (T + 3)
    a('v_mov_b32 v%d, %s' % (T + 4, f2u(1.0 / 512)))
    a('v_mul_f32 %s, s41, v%d' % (ma, T + 4))
    a('v_mul_f32 %s, s42, v%d' % (mb, T + 4))
    a('v_mov_b32 %s, 0' % sa)
    a('v_mov_b32 %s, 0' % sb)
    for i in range(8):
        a('v_sub_f32 v%d, v%d, %s' % (T + 6, FA + i, ma))
        a('v_sub_f32 v%d, v%d, %s' % (T + 7, FB + i, mb))
        a('v_fmac_f32 %s, v%d, v%d' % (sa, T + 6, T + 6))
        a('v_fmac_f32 %s, v%d, v%d' % (sb, T + 7, T + 7))
    wave_reduce(a, [sa, sb])
    bf16r(a, ma, ma)
    bf16r(a, mb, mb)
    a('v_readlane_b32 s41, %s, 63' % sa)
    a('v_readlane_b32 s42, %s, 63' % sb)
    for (f, m) in ((FA, ma), (FB, mb)):
        for i in range(8):
            a('v_sub_f32 v%d, v%d, %s' % (f + i, f + i, m))
    a('v_mul_f32 %s, s41, v%d' % (sa, T + 4))
    a('v_mul_f32 %s, s42, v%d' % (sb, T + 4))
    for s_ in (sa, sb):
        bf16r(a, s_, s_)
    for s_ in (sa, sb):
        a('v_add_f32 %s, %s, %s' % (s_, f2u(1e-5), s_))
    for s_ in (sa, sb):
        bf16r(a, s_, s_)
    for s_ in (sa, sb):
        a('v_sqrt_f32 %s, %s' % (s_, s_))
    for (f, xn) in ((FA, XNA), (FB, XNB)):
        for i in range(4):
            a('v_cvt_pk_bf16_f32 v%d, v%d, v%d' % (xn + i, f + 2 * i, f + 2 * i + 1))
    for s_ in (sa, sb):
        bf16r(a, s_, s_)
    for s_ in (sa, sb):
        a('v_rcp_f32 %s, %s' % (s_, s_))
    for (f, xn) in ((FA, XNA), (FB, XNB)):
        for i in range(4):
            a('v_lshlrev_b32 v%d, 16, v%d' % (f + 2 * i, xn + i))
            a('v_and_b32 v%d, 0xffff0000, v%d' % (f + 2 * i + 1, xn + i))
    for (f, s_) in ((FA, sa), (FB, sb)):
        for i in range(8):
            a('v_mul_f32 v%d, v%d, %s' % (f + i, f + i, s_))
    for (f, xn) in ((FA, XNA), (FB, XNB)):
        for i in range(4):
            a('v_cvt_pk_bf16_f32 v%d, v%d, v%d' % (xn + i, f + 2 * i, f + 2 * i + 1))
    a('v_mov_b32 %s, 0' % sa)
    a('v_mov_b32 %s, 0' % sb)
    for i in range(4):
        a('v_dot2c_f32_bf16 %s, v%d, v%d' % (sa, XNA + i, WR + i))
        a('v_dot2c_f32_bf16 %s, v%d, v%d' % (sb, XNB + i, WR + i))
    wave_reduce(a, [sa, sb])
    a('v_cvt_pk_bf16_f32 %s, %s, %s' % (sa, sa, sb))
    a('v_readlane_b32 s41, %s, 63' % sa)
    for (k, srcop) in ((0, 's_lshl_b32 s42, s41, 16'), (1, 's_and_b32 s42, s41, 0xffff0000')):
        a(srcop)
        a('s_ashr_i32 s43, s42, 31')
        a('s_and_b32 s43, s43, 0x7fff0000')
        a('s_xor_b32 s42, s42, s43')
        a('s_xor_b32 s42, s42, 0x80000000')
        a('s_sub_u32 s43, %d, s38' % (0x8000 + 2047 - k))
        a('s_or_b32 s42, s42, s43')
        a('v_mov_b32 v%d, s42' % (KEYV + k))
    a('s_mov_b32 s24, 0')
    stamp(a, opt, 4)
    a('s_waitcnt vmcnt(14)')
    stamp(a, opt, 5)
    for tp in range(4):
        a('ds_read_b128 %s, v%d' % (vr(AF + tp * 4, 4), VAC + tp))
    a('s_cmp_eq_u32 s20, 10')
    a('s_cbranch_scc1 k1_loop_nns')
    a('s_cmp_gt_u32 s20, 10')
    a('s_cbranch_scc1 k1_loop_sss')
    mainloop(a, 'NNN', 'nnn')
    mainloop(a, 'NNS', 'nns')
    mainloop(a, 'SSS', 'sss')
    a.label('k1_post')
    stamp(a, opt, 6)
    sm, sq, mean, var, rs = ['v%d' % (T + i) for i in range(5)]
    t0, t1 = 'v%d' % (T + 5), 'v%d' % (T + 6)
    a('s_nop 2')
    a('v_add_f32 %s, v%d, v%d' % (sm, ST, ST + 2))
    a('v_add_f32 %s, v%d, v%d' % (sq, ST + 1, ST + 3))
    a('v_mov_b32 %s, %s' % (t0, sm))
    a('v_mov_b32 %s, %s' % (t1, sq))
    a('v_permlane32_swap_b32 %s, %s' % (t0, sm))
    a('v_permlane32_swap_b32 %s, %s' % (t1, sq))
    a('v_add_f32 %s, %s, %s' % (sm, sm, t0))
    a('v_add_f32 %s, %s, %s' % (sq, sq, t1))
    a('v_mul_f32 %s, %s, %s' % (mean, f2u(1.0 / 512), sm))
    a('v_mul_f32 %s, %s, %s' % (sq, f2u(1.0 / 512), sq))
    a('v_fma_f32 %s, -%s, %s, %s' % (var, mean, mean, sq))
    a('v_mul_f32 %s, %s, %s' % (t0, f2u(1024.0), var))
    a('v_cmp_lt_f32 vcc, %s, %s' % (t0, sq))
    a('v_lshlrev_b32 v4, 4, %s' % l)
    a('v_lshl_add_u32 v5, s18, 2, v4')
    for ct in range(3):
        for hh in range(2):
            c = 'v%d' % (CS + ct * 4 + hh)
            u = 'v%d' % (CS + ct * 4 + 2 + hh)
            a('v_and_b32 %s, 0xffff0000, %s' % (u, c))
            a('v_sub_f32 %s, %s, %s' % (c, c, u))
            a('v_cvt_pk_bf16_f32 %s, %s, %s' % (c, u, c))
    a('s_mov_b64 exec, 0xffff')
    for ct in range(3):
        for hh in range(2):
            a('ds_write_b32 v5, v%d offset:%d' % (CS + ct * 4 + hh, LDS_CS + (ct * 32 + hh * 16) * 16))
    a('s_mov_b64 exec, -1')
    a('s_cbranch_vccnz k1_var2')
    a.label('k1_var_done')
    bf16r(a, var, var)
    a('v_add_f32 %s, %s, %s' % (var, f2u(1e-5), var))
    bf16r(a, var, var)
    a('v_sqrt_f32 %s, %s' % (var, var))
    a('v_cvt_pk_bf16_f32 %s, -%s, -%s' % (t1, mean, mean))
    bf16r(a, var, var)
    a('v_rcp_f32 %s, %s' % (rs, var))
    MF = AF
    a('v_cmp_gt_u32 vcc, 32, %s' % l)
    a('v_and_b32 v6, 31, %s' % l)
    a('v_lshlrev_b32 v7, 2, v6')
    a('v_lshl_add_u32 v7, s18, 7, v7')
    for i in range(4):
        a('v_cndmask_b32 v%d, 0, %s, vcc' % (MF + i, t1))
    a('ds_write_b32 v7, %s offset:%d' % (rs, LDS_RS))
    a('v_lshlrev_b32 v6, 4, v6')
    a('v_lshrrev_b32 v8, 5, %s' % l)
    a('v_lshlrev_b32 v9, 4, v8')
    a('v_lshl_add_u32 v9, s18, 7, v9')
    a('s_waitcnt lgkmcnt(0)')
    a('s_barrier')
    for ct in range(3):
        a('ds_read_b128 %s, v6 offset:%d' % (vr(WF[0] + ct * 4, 4), LDS_CS + ct * 512))
    for q in range(4):
        a('ds_read_b128 %s, v9 offset:%d' % (vr(RSV + q * 4, 4), LDS_RS + q * 32))
    a('s_add_u32 s39, s39, 0x%x' % XN)
    a('s_add_u32 s40, s39, 1024')
    a('buffer_store_dwordx4 %s, v4, s[12:15], s39 offen' % vr(XNA, 4))
    a('buffer_store_dwordx4 %s, v4, s[12:15], s40 offen' % vr(XNB, 4))
    a('s_lshl_b32 s41, s38, 2')
    a('s_add_u32 s41, s41, 0x%x' % KEY)
    a('v_mov_b32 v10, 0')
    a('v_mov_b32 v12, -1')
    a('v_mov_b32 v13, -1')
    a('s_mov_b64 exec, 1')
    a('buffer_store_dwordx2 %s, v10, s[12:15], s41 offen' % vr(KEYV, 2))
    a('s_lshl_b32 s41, s2, 7')
    a('s_lshl_b32 s42, s18, 5')
    a('s_add_u32 s41, s41, s42')
    a('s_add_u32 s41, s41, 0x%x' % HB)
    a('s_mov_b64 exec, 15')
    a('v_lshlrev_b32 v11, 3, %s' % l)
    a('buffer_store_dwordx2 v[12:13], v11, s[12:15], s41 offen')
    a('s_or_b32 s42, s2, s18')
    a('s_cmp_lg_u32 s42, 0')
    a('s_cbranch_scc1 k1_nosel')
    a('v_mov_b32 v14, 0')
    a('v_mov_b32 v15, 0')
    a('s_mov_b32 s41, 0x%x' % SEL)
    a('buffer_store_dwordx2 v[14:15], v11, s[12:15], s41 offen')
    a.label('k1_nosel')
    a('s_mov_b64 exec, -1')
    a('v_and_b32 v10, 16, %s' % l)
    a('v_lshlrev_b32 v10, 13, v10')
    a('v_lshl_add_u32 v10, v8, 9, v10')
    a('v_and_b32 v11, 15, %s' % l)
    a('v_lshl_add_u32 v10, v11, 4, v10')
    a('v_mul_f32 %s, %s, %s' % (t0, f2u(QSCALE), rs))
    a('s_mul_i32 s44, s20, 3')
    a('s_waitcnt lgkmcnt(4)')
    for ct in range(3):
        lv, ld = a.newlabel('k1_augv'), a.newlabel('k1_augd')
        d = vr(ACC + ct * 16, 16)
        a('s_cmp_ge_u32 s44, %d' % (32 - ct))
        a('s_cbranch_scc1 %s' % lv)
        a('v_mfma_f32_32x32x16_bf16 %s, %s, %s, %s' % (d, vr(WF[0] + ct * 4, 4), vr(MF, 4), d))
        a('s_branch %s' % ld)
        a.label(lv)
        a('v_mfma_f32_32x32x16_bf16 %s, %s, %s, %s' % (d, vr(MF, 4), vr(WF[0] + ct * 4, 4), d))
        a.label(ld)
    a('s_waitcnt lgkmcnt(0)')
    stamp(a, opt, 7)
    a('s_nop 7')
    for ct in range(3):
        lv, ld, lq = a.newlabel('k1_v'), a.newlabel('k1_d'), a.newlabel('k1_q')
        A0 = ACC + ct * 16
        a('s_add_u32 s45, s44, %d' % ct)
        a('s_and_b32 s46, s45, 15')
        a('s_cmp_ge_u32 s45, 32')
        a('s_cbranch_scc1 %s' % lv)
        a('s_cmp_ge_u32 s45, 16')
        a('s_cselect_b32 s47, 1, 0')
        a('s_cselect_b64 vcc, -1, 0')
        a('s_add_u32 s48, s47, 16')
        a('s_add_u32 s49, s47, 10')
        a('s_lshl_b32 s50, s46, 1')
        a('s_lshl_b32 s50, s50, s48')
        a('s_lshl_b32 s51, s35, s49')
        a('s_add_u32 s50, s50, s51')
        a('s_lshl_b32 s51, s47, 21')
        a('s_add_u32 s50, s50, s51')
        a('s_lshl_b32 s51, 1, s48')
        a('s_add_u32 s51, s51, s50')
        a('v_cndmask_b32 %s, %s, %s, vcc' % (t1, t0, rs))
        for i in range(16):
            a('v_mul_f32 v%d, v%d, %s' % (A0 + i, A0 + i, t1))
        for i in range(8):
            a('v_cvt_pk_bf16_f32 v%d, v%d, v%d' % (PK + i, A0 + 2 * i, A0 + 2 * i + 1))
        a('buffer_store_dwordx4 %s, v4, s[12:15], s50 offen' % vr(PK, 4))
        a('buffer_store_dwordx4 %s, v4, s[12:15], s51 offen' % vr(PK + 4, 4))
        a('s_cmp_eq_u32 s47, 0')
        a('s_cbranch_scc1 %s' % ld)
        na, nb = 'v%d' % (T + 8), 'v%d' % (T + 9)
        a('v_mov_b32 %s, 0' % na)
        a('v_mov_b32 %s, 0' % nb)
        for i in range(4):
            a('v_dot2c_f32_bf16 %s, v%d, v%d' % (na, PK + i, PK + i))
            a('v_dot2c_f32_bf16 %s, v%d, v%d' % (nb, PK + 4 + i, PK + 4 + i))
        a('v_permlane32_swap_b32 %s, %s' % (na, nb))
        a('v_add_f32 %s, %s, %s' % (na, na, nb))
        for s in ['quad_perm:[1,0,3,2] row_mask:0xf bank_mask:0xf', 'quad_perm:[2,3,0,1] row_mask:0xf bank_mask:0xf',
                  'row_half_mirror row_mask:0xf bank_mask:0xf', 'row_mirror row_mask:0xf bank_mask:0xf',
                  'row_bcast:15 row_mask:0xa bank_mask:0xf']:
            a('v_max_f32_dpp %s, %s, %s %s' % (na, na, na, s))
        a('s_lshl_b32 s50, s46, 9')
        a('s_lshl_b32 s51, s35, 2')
        a('s_add_u32 s50, s50, s51')
        a('s_add_u32 s50, s50, 0x%x' % KNORM)
        a('v_lshlrev_b32 %s, 8, v8' % nb)
        a('s_mov_b32 exec_lo, 0x80000000')
        a('s_mov_b32 exec_hi, 0x80000000')
        a('buffer_store_dword %s, %s, s[12:15], s50 offen' % (na, nb))
        a('s_mov_b64 exec, -1')
        a('s_branch %s' % ld)
        a.label(lv)
        a('s_lshl_b32 s50, s46, 18')
        a('s_lshl_b32 s51, s35, 11')
        a('s_add_u32 s50, s50, s51')
        a('s_add_u32 s50, s50, 0x%x' % (KV + 1024))
        for i in range(16):
            a('v_mul_f32 v%d, v%d, v%d' % (A0 + i, A0 + i, RSV + i))
        for i in range(8):
            a('v_cvt_pk_bf16_f32 v%d, v%d, v%d' % (PK + i, A0 + 2 * i, A0 + 2 * i + 1))
        a('buffer_store_dwordx4 %s, v10, s[12:15], s50 offen' % vr(PK, 4))
        a('buffer_store_dwordx4 %s, v10, s[12:15], s50 offen offset:256' % vr(PK + 4, 4))
        a.label(ld)
        a('s_nop 1')
    stamp(a, opt, 8)
    if opt.get('stamp'):
        a('s_waitcnt vmcnt(0)')
    stamp(a, opt, 9)
    stamp_rt(a, opt, 11)
    stamp_flush(a, opt, 0, 's[12:15]', 's18', 4)
    a.label('k1_end')
    a('s_endpgm')
    a.label('k1_var2')
    a('v_and_b32 v6, 31, %s' % l)
    a('v_lshrrev_b32 v7, 5, %s' % l)
    a('v_lshlrev_b32 v6, 10, v6')
    a('v_lshl_add_u32 v6, v7, 9, v6')
    a('s_mov_b32 s27, s22')
    a('s_add_u32 s28, s22, 512')
    a('v_mov_b32 %s, 0' % var)
    a.label('k1_var2_loop')
    a('buffer_load_dwordx4 %s, v6, s[4:7], s27 offen' % vr(AF, 4))
    a('s_waitcnt vmcnt(0)')
    for i in range(4):
        a('v_lshlrev_b32 %s, 16, v%d' % (t0, AF + i))
        a('v_and_b32 %s, 0xffff0000, v%d' % (t1, AF + i))
        a('v_sub_f32 %s, %s, %s' % (t0, t0, mean))
        a('v_sub_f32 %s, %s, %s' % (t1, t1, mean))
        a('v_fmac_f32 %s, %s, %s' % (var, t0, t0))
        a('v_fmac_f32 %s, %s, %s' % (var, t1, t1))
    a('s_add_u32 s27, s27, 16')
    a('s_cmp_lt_u32 s27, s28')
    a('s_cbranch_scc1 k1_var2_loop')
    a('v_mov_b32 %s, %s' % (t0, var))
    a('v_permlane32_swap_b32 %s, %s' % (t0, var))
    a('v_add_f32 %s, %s, %s' % (var, var, t0))
    a('v_mul_f32 %s, %s, %s' % (var, f2u(1.0 / 512), var))
    a('s_branch k1_var_done')
```

```python
from common import *

LKV = 32768
EXCH = 20480
BRED = 57344
K2_LDS = 163840
THRESH = 40.0

SA, SB, OA, OB, CM = 16, 32, 48, 64, 80
PA, PB, QA, QB, KF, VF = 96, 104, 112, 116, 120, 124
VADDR, VL, VL16 = 132, 133, 134
MA, MB = 136, 137
T = 138
X = 148
WB = 212
DD = 228
U = 232
K2_VGPR = 248


def phase(a, S, P, pre, mid1, mid2, extra=None):
    e = lambda i: 'v_exp_f32 v%d, v%d' % (S + i, S + i)
    c = lambda i: 'v_cvt_pk_bf16_f32 v%d, v%d, v%d' % (P + i, S + 2 * i, S + 2 * i + 1)
    for x in pre:
        a(x)
    for i in range(4):
        a(e(i))
    for x in mid1:
        a(x)
    a(e(4)); a(e(5)); a(c(0)); a(e(6)); a(e(7)); a(c(1))
    for x in mid2:
        a(x)
    a(e(8)); a(e(9)); a(c(2)); a(e(10)); a(e(11)); a(c(3))
    a(e(12)); a(e(13)); a(c(4)); a(e(14)); a(e(15)); a(c(5)); a(c(6)); a(c(7))


def mf(d, x, y, c=None):
    return 'v_mfma_f32_32x32x16_bf16 %s, %s, %s, %s' % (vr(d, 16), vr(x, 4), vr(y, 4), vr(d if c is None else c, 16))


def fast_body(a):
    for u in range(4):
        o = u * 4096
        phase(a, SA, PA,
              [mf(SB, KF, QB, CM), 'ds_read_b128 %s, v%d offset:%d' % (vr(KF, 4), VADDR, o + 4096)],
              [mf(OB, VF, PB)],
              [mf(OB, VF + 4, PB + 4), 's_mov_b64 exec, s[40:41]',
               'ds_read_b128 %s, v%d offset:%d' % (vr(VF, 4), VADDR, o + 1024),
               'ds_read_b128 %s, v%d offset:%d' % (vr(VF + 4, 4), VADDR, o + 1280),
               's_mov_b64 exec, -1'])
        phase(a, SB, PB,
              ['s_waitcnt lgkmcnt(2)', mf(SA, KF, QA, CM)],
              ['s_waitcnt lgkmcnt(0)', mf(OA, VF, PA)],
              [mf(OA, VF + 4, PA + 4)])
    a('v_add_u32 v%d, 0x4000, v%d' % (VADDR, VADDR))


def slow_body(a):
    a('s_mov_b32 s45, 0')
    a.label('k2_slow_tile')
    a('ds_read_b128 %s, v%d' % (vr(KF, 4), VADDR))
    a('s_mov_b64 exec, s[40:41]')
    a('ds_read_b128 %s, v%d offset:1024' % (vr(VF, 4), VADDR))
    a('ds_read_b128 %s, v%d offset:1280' % (vr(VF + 4, 4), VADDR))
    a('s_mov_b64 exec, -1')
    a('s_waitcnt lgkmcnt(0)')
    for (S, Q, O, P, M) in ((SA, QA, OA, PA, MA), (SB, QB, OB, PB, MB)):
        a('v_mfma_f32_32x32x16_bf16 %s, %s, %s, 0' % (vr(S, 16), vr(KF, 4), vr(Q, 4)))
        t0, t1 = 'v%d' % T, 'v%d' % (T + 1)
        a('v_max3_f32 %s, v%d, v%d, v%d' % (t0, S, S + 1, M))
        for i in range(1, 8):
            a('v_max3_f32 %s, v%d, v%d, %s' % (t0, S + 2 * i, S + 2 * i + 1, t0))
        a('v_mov_b32 %s, %s' % (t1, t0))
        a('v_permlane32_swap_b32 %s, %s' % (t0, t1))
        a('v_max_f32 %s, %s, %s' % (t0, t0, t1))
        a('v_sub_f32 %s, v%d, %s' % (t1, M, t0))
        a('v_exp_f32 %s, %s' % (t1, t1))
        a('v_mov_b32 v%d, %s' % (M, t0))
        for i in range(16):
            a('v_sub_f32 v%d, v%d, %s' % (S + i, S + i, t0))
        for i in range(16):
            a('v_mul_f32 v%d, v%d, %s' % (O + i, O + i, t1))
        for i in range(16):
            a('v_exp_f32 v%d, v%d' % (S + i, S + i))
        for i in range(8):
            a('v_cvt_pk_bf16_f32 v%d, v%d, v%d' % (P + i, S + 2 * i, S + 2 * i + 1))
        a(mf(O, VF, P))
        a(mf(O, VF + 4, P + 4))
    a('v_add_u32 v%d, 0x1000, v%d' % (VADDR, VADDR))
    a('s_add_u32 s45, s45, 1')
    a('s_cmp_lt_u32 s45, 4')
    a('s_cbranch_scc1 k2_slow_tile')
    a('s_nop 7')
    a('s_nop 3')


def silu(a, dst, src, t):
    a('v_mul_f32 %s, %s, %s' % (t, f2u(NLOG2E), src))
    a('v_exp_f32 %s, %s' % (t, t))
    a('v_add_f32 %s, 1.0, %s' % (t, t))
    a('v_rcp_f32 %s, %s' % (t, t))
    a('v_mul_f32 %s, %s, %s' % (dst, src, t))


def poll_sel(a, dst, tmp):
    lab = a.newlabel('k2_psel')
    go = a.newlabel('k2_psel_ok')
    a('v_and_b32 %s, 7, v%d' % (tmp, VL))
    a('v_lshlrev_b32 %s, 2, %s' % (tmp, tmp))
    a('s_mov_b32 s46, 0x%x' % SEL)
    a('s_mov_b32 s48, 0')
    a.label(lab)
    a('buffer_load_dword %s, %s, s[4:7], s46 offen sc1' % (dst, tmp))
    a('s_waitcnt vmcnt(0)')
    a('v_cmp_eq_u32 vcc, 0, %s' % dst)
    a('s_cbranch_vccz %s' % go)
    a('s_sleep 4')
    a('s_add_u32 s48, s48, 1')
    a('s_cmp_lt_u32 s48, 0x10000')
    a('s_cbranch_scc1 %s' % lab)
    a.label(go)


def gen_k2(a, opt):
    l = 'v%d' % VL
    a('s_cmp_ge_u32 s2, 256')
    a('s_cbranch_scc1 k2_end')
    stamp(a, opt, 0)
    stamp_rt(a, opt, 10)
    a('s_load_dwordx2 s[4:5], s[0:1], 80')
    a('s_load_dwordx4 s[8:11], s[0:1], 40')
    a('s_load_dwordx2 s[16:17], s[0:1], 56')
    a('s_load_dwordx2 s[20:21], s[0:1], 16')
    a('s_load_dwordx2 s[22:23], s[0:1], 0')
    a('v_lshrrev_b32 v1, 6, v0')
    a('v_and_b32 %s, 63, v0' % l)
    a('v_readfirstlane_b32 s24, v1')
    a('v_lshlrev_b32 v%d, 4, %s' % (VL16, l))
    a('s_mov_b32 s6, 0x%x' % WS_USED)
    a('s_mov_b32 s7, 0x20000')
    a('s_and_b32 s25, s2, 7')
    a('s_lshr_b32 s26, s2, 3')
    a('s_and_b32 s27, s26, 3')
    a('s_lshl_b32 s28, s25, 2')
    a('s_add_u32 s27, s27, s28')
    a('s_lshr_b32 s28, s26, 2')
    a('s_and_b32 s29, s24, 3')
    a('s_lshr_b32 s30, s24, 2')
    a('s_lshl_b32 s31, s28, 3')
    a('s_lshl_b32 s32, s29, 1')
    a('s_add_u32 s31, s31, s32')
    a('s_add_u32 s31, s31, s30')
    a('s_xor_b32 s32, s31, 1')
    a('s_lshl_b32 s33, s27, 16')
    a('s_lshl_b32 s34, s31, 10')
    a('s_add_u32 s34, s34, s33')
    a('s_lshl_b32 s35, s32, 10')
    a('s_add_u32 s35, s35, s33')
    a('s_lshl_b32 s36, s27, 8')
    a('s_add_u32 s36, s36, 0x%x' % KNORM)
    a('v_lshlrev_b32 v2, 2, %s' % l)
    a('s_lshl_b32 s37, s27, 17')
    a('s_add_u32 s37, s37, 0x%x' % KV)
    if opt.get('k2rot', 0):
        a('s_lshl_b32 s38, s28, %d' % opt['k2rot'])
        a('s_add_u32 s38, s38, s24')
    else:
        a('s_mov_b32 s38, s24')
    a('s_lshl_b32 s39, s24, 10')
    a('s_add_u32 s39, s39, %d' % LKV)
    a('s_waitcnt lgkmcnt(0)')
    a('buffer_load_dwordx4 %s, v%d, s[4:7], s34 offen' % (vr(QA, 4), VL16))
    a('buffer_load_dwordx4 %s, v%d, s[4:7], s35 offen' % (vr(QB, 4), VL16))
    a('buffer_load_dword v3, v2, s[4:7], s36 offen')
    for i in range(16):
        a('s_and_b32 s42, s38, 127')
        a('s_lshl_b32 s42, s42, 10')
        a('s_add_u32 s42, s42, s37')
        a('s_add_u32 m0, s39, %d' % (i * 8192))
        a('s_add_u32 s38, s38, 8')
        a('buffer_load_dwordx4 v%d, s[4:7], s42 offen lds' % VL16)
    a('s_mov_b32 s12, s10')
    a('s_mov_b32 s13, s11')
    a('s_mov_b32 s10, %d' % (512 * 3584))
    a('s_mov_b32 s11, 0x20000')
    a('s_mov_b32 s14, %d' % (512 * 3584))
    a('s_mov_b32 s15, 0x20000')
    a('s_mov_b32 s18, %d' % (1792 * 1024))
    a('s_mov_b32 s19, 0x20000')
    a('s_mov_b32 s40, 0xffff')
    a('s_mov_b32 s41, 0xffff')
    a('s_lshl_b32 s42, s30, 11')
    a('s_add_u32 s42, s42, %d' % LKV)
    a('v_add_u32 v%d, s42, v%d' % (VADDR, VL16))
    for i in range(16):
        a('v_mov_b32 v%d, 0' % (OA + i))
        a('v_mov_b32 v%d, 0' % (OB + i))
    for i in range(8):
        a('v_mov_b32 v%d, 0' % (PB + i))
        a('v_mov_b32 v%d, 0x%x' % (VF + i, ONES_BF))
    a('v_mov_b32 v%d, %s' % (MA, f2u(-3.0e38)))
    a('v_mov_b32 v%d, %s' % (MB, f2u(-3.0e38)))
    na, nb, t0 = 'v4', 'v5', 'v6'
    a('v_mov_b32 %s, 0' % na)
    a('v_mov_b32 %s, 0' % nb)
    stamp(a, opt, 1)
    a('s_waitcnt vmcnt(16)')
    stamp(a, opt, 2)
    for i in range(4):
        a('v_dot2c_f32_bf16 %s, v%d, v%d' % (na, QA + i, QA + i))
        a('v_dot2c_f32_bf16 %s, v%d, v%d' % (nb, QB + i, QB + i))
    wave_reduce(a, ['v3'], 'v_max_f32')
    a('v_permlane32_swap_b32 %s, %s' % (na, nb))
    a('v_add_f32 %s, %s, %s' % (na, na, nb))
    a('v_readlane_b32 s42, v3, 63')
    a('v_mov_b32 %s, %s' % (nb, na))
    a('v_permlane32_swap_b32 %s, %s' % (na, nb))
    a('v_max_f32 %s, %s, %s' % (na, na, nb))
    a('v_mul_f32 %s, s42, %s' % (na, na))
    a('v_sqrt_f32 %s, %s' % (na, na))
    a('v_mul_f32 %s, %s, %s' % (na, f2u(-1.02), na))
    a('v_cmp_nle_f32 vcc, %s, %s' % (f2u(-THRESH), na))
    for i in range(16):
        a('v_mov_b32 v%d, %s' % (CM + i, na))
    a('s_cmp_lg_u64 vcc, 0')
    a('s_cselect_b32 s43, 1, 0')
    if opt.get('force_slow'):
        a('s_mov_b32 s43, 1')
    a('s_waitcnt vmcnt(13)')
    a('s_barrier')
    stamp(a, opt, 3)
    a('ds_read_b128 %s, v%d' % (vr(KF, 4), VADDR))
    a('s_mov_b32 s44, 0')
    a('s_waitcnt lgkmcnt(0)')
    a(mf(SA, KF, QA, CM))
    a('s_nop 7')
    a('s_branch k2_body')
    a.label('k2_loop')
    a('s_cmp_eq_u32 s44, 1')
    a('s_cbranch_scc1 k2_hook1')
    a('s_cmp_eq_u32 s44, 2')
    a('s_cbranch_scc1 k2_hook2')
    a('s_cmp_eq_u32 s44, 3')
    a('s_cbranch_scc1 k2_hook3')
    a('s_cmp_eq_u32 s44, 4')
    a('s_cbranch_scc1 k2_hook4')
    a('s_cmp_eq_u32 s44, 6')
    a('s_cbranch_scc1 k2_hook6')
    a.label('k2_body')
    a('s_cmp_lg_u32 s43, 0')
    a('s_cbranch_scc1 k2_slow')
    a('.p2align 3')
    fast_body(a)
    a.label('k2_next')
    a('s_add_u32 s44, s44, 1')
    a('s_cmp_lt_u32 s44, 8')
    a('s_cbranch_scc1 k2_loop')
    stamp(a, opt, 8)
    a('s_cmp_lg_u32 s43, 0')
    a('s_cbranch_scc1 k2_nopv')
    a(mf(OB, VF, PB))
    a(mf(OB, VF + 4, PB + 4))
    a.label('k2_nopv')
    a('s_mul_i32 s45, s24, 3072')
    a('s_add_u32 s45, s45, %d' % EXCH)
    a('s_xor_b32 s46, s24, 4')
    a('s_mul_i32 s46, s46, 3072')
    a('s_add_u32 s46, s46, %d' % EXCH)
    a('v_add_u32 v4, s45, v%d' % VL16)
    a('v_add_u32 v5, s46, v%d' % VL16)
    a('s_lshl_b32 s47, s31, 15')
    a('s_lshl_b32 s48, s27, 10')
    a('s_add_u32 s47, s47, s48')
    a('s_add_u32 s47, s47, 0x%x' % OF)
    a('s_nop 4')
    a('v_mov_b32 v%d, v%d' % (OB + 9, MB))
    a('ds_write_b128 v4, %s' % vr(OB, 4))
    a('ds_write_b128 v4, %s offset:1024' % vr(OB + 4, 4))
    a('ds_write_b64 v4, %s offset:2048' % vr(OB + 8, 2))
    a('s_waitcnt lgkmcnt(0)')
    a('s_barrier')
    a('ds_read_b128 %s, v5' % vr(SA, 4))
    a('ds_read_b128 %s, v5 offset:1024' % vr(SA + 4, 4))
    a('ds_read_b64 %s, v5 offset:2048' % vr(SA + 8, 2))
    a('s_waitcnt lgkmcnt(0)')
    a('s_cmp_lg_u32 s43, 0')
    a('s_cbranch_scc1 k2_merge_slow')
    a.label('k2_merged')
    a('v_add_f32 v%d, v%d, v%d' % (OA + 8, OA + 8, SA + 8))
    a('v_rcp_f32 v%d, v%d' % (OA + 8, OA + 8))
    for i in range(8):
        a('v_add_f32 v%d, v%d, v%d' % (OA + i, OA + i, SA + i))
    for i in range(8):
        a('v_mul_f32 v%d, v%d, v%d' % (OA + i, OA + i, OA + 8))
    for i in range(4):
        a('v_cvt_pk_bf16_f32 v%d, v%d, v%d' % (PA + i, OA + 2 * i, OA + 2 * i + 1))
    a('buffer_store_dwordx4 %s, v%d, s[4:7], s47 offen' % (vr(PA, 4), VL16))
    if opt.get('stamp'):
        a('s_waitcnt vmcnt(0)')
    stamp(a, opt, 9)
    stamp_rt(a, opt, 11)
    dbg_flush(a, opt, 1, 's24', [10, 11, 1, 3, 8], 6)
    stamp_flush(a, opt, 1, 's[4:7]', 's24', 8)
    a.label('k2_end')
    a('s_endpgm')
    a.label('k2_merge_slow')
    a('v_max_f32 v6, v%d, v%d' % (MA, SA + 9))
    a('v_sub_f32 v7, v%d, v6' % MA)
    a('v_sub_f32 v8, v%d, v6' % (SA + 9))
    a('v_exp_f32 v7, v7')
    a('v_exp_f32 v8, v8')
    for i in range(9):
        a('v_mul_f32 v%d, v%d, v7' % (OA + i, OA + i))
        a('v_mul_f32 v%d, v%d, v8' % (SA + i, SA + i))
    a('s_branch k2_merged')
    a.label('k2_slow')
    slow_body(a)
    a('s_branch k2_next')
    a.label('k2_hook1')
    stamp(a, opt, 4)
    a('s_waitcnt vmcnt(6)')
    a('s_barrier')
    a('s_branch k2_body')
    a.label('k2_hook2')
    stamp(a, opt, 5)
    a('s_waitcnt vmcnt(0)')
    a('s_barrier')
    a('s_cmp_lt_u32 s24, 4')
    a('s_cbranch_scc1 k2_h2_nopf')
    a('v_lshlrev_b32 v4, 7, %s' % l)
    a('s_cmp_lt_u32 s24, 6')
    a('s_cbranch_scc0 k2_h2_pfx')
    a('s_lshl_b32 s45, s26, 1')
    a('s_add_u32 s45, s45, s29')
    a('s_lshl_b32 s45, s45, 13')
    a('v_add_u32 v4, s45, v4')
    a('global_load_dword v15, v4, s[20:21]')
    a('s_branch k2_h2_nopf')
    a.label('k2_h2_pfx')
    a('s_lshl_b32 s45, s25, 5')
    a('s_add_u32 s45, s45, s26')
    a('s_lshl_b32 s45, s45, 13')
    a('s_cmp_eq_u32 s24, 6')
    a('s_cbranch_scc0 k2_h2_pfxn')
    a('v_add_u32 v4, s45, v4')
    a('global_load_dword v15, v4, s[22:23]')
    a('s_branch k2_h2_nopf')
    a.label('k2_h2_pfxn')
    a('s_add_u32 s45, s45, 0x%x' % XN)
    a('buffer_load_dword v15, v4, s[4:7], s45 offen')
    a.label('k2_h2_nopf')
    a('s_cmp_eq_u32 s24, 2')
    a('s_cbranch_scc0 k2_h2_norank')
    a('s_lshl_b32 s45, s2, 5')
    a('s_add_u32 s45, s45, 0x%x' % KEY)
    a('s_add_u32 s52, s4, s45')
    a('s_addc_u32 s53, s5, 0')
    a('s_load_dwordx8 s[56:63], s[52:53], 0')
    for i in range(8):
        a('s_mov_b32 s45, 0x%x' % (KEY + i * 1024))
        a('buffer_load_dwordx4 %s, v%d, s[4:7], s45 offen' % (vr(X + 4 * i, 4), VL16))
    a('s_waitcnt lgkmcnt(0)')
    a.label('k2_h2_norank')
    a('s_cmp_lt_u32 s26, 28')
    a('s_cbranch_scc0 k2_h2_B')
    a('s_cmp_eq_u32 s24, 0')
    a('s_cbranch_scc0 k2_body')
    a('s_mul_i32 s45, s25, 28')
    a('s_add_u32 s45, s45, s26')
    a('s_lshl_b32 s45, s45, 4')
    a('s_movk_i32 s46, 3584')
    a('v_mul_u32_u24 v4, s46, %s' % l)
    for i in range(8):
        a('s_mov_b32 m0, %d' % (i * 1024))
        a('buffer_load_dwordx4 v4, s[8:11], s45 offen lds')
        a('s_mov_b32 m0, %d' % (8256 + i * 1024))
        a('buffer_load_dwordx4 v4, s[12:15], s45 offen lds')
        if i < 7:
            a('s_add_u32 s45, s45, %d' % (64 * 3584))
    a('s_branch k2_body')
    a.label('k2_h2_B')
    a('s_cmp_lt_u32 s24, 7')
    a('s_cbranch_scc0 k2_body')
    a('s_lshl_b32 s45, s25, 2')
    a('s_add_u32 s45, s45, s26')
    a('s_sub_u32 s45, s45, 28')
    a('s_lshl_b32 s45, s45, 5')
    a('s_lshl_b32 s46, s24, 18')
    a('s_add_u32 s45, s45, s46')
    a('s_lshl_b32 s46, s24, 13')
    a('v_lshrrev_b32 v4, 1, %s' % l)
    a('v_and_b32 v5, 1, %s' % l)
    a('v_lshlrev_b32 v5, 4, v5')
    a('v_lshl_add_u32 v4, v4, 10, v5')
    for i in range(8):
        a('s_add_u32 m0, s46, %d' % (i * 1024))
        a('buffer_load_dwordx4 v4, s[16:19], s45 offen lds')
        if i < 7:
            a('s_add_u32 s45, s45, 32768')
    a('s_branch k2_body')
    a.label('k2_hook3')
    a('s_cmp_eq_u32 s24, 2')
    a('s_cbranch_scc0 k2_body')
    a('s_cmp_lt_u32 s26, 28')
    a('s_cbranch_scc1 k2_h3_a')
    a('s_waitcnt vmcnt(8)')
    a('s_branch k2_h3_b')
    a.label('k2_h3_a')
    a('s_waitcnt vmcnt(0)')
    a.label('k2_h3_b')
    a('v_max3_u32 v4, v%d, v%d, v%d' % (X, X + 1, X + 2))
    a('v_max3_u32 v5, v%d, v%d, v%d' % (X + 3, X + 4, X + 5))
    for i in range(6, 30, 4):
        a('v_max3_u32 v4, v%d, v%d, v4' % (X + i, X + i + 1))
        a('v_max3_u32 v5, v%d, v%d, v5' % (X + i + 2, X + i + 3))
    a('v_max3_u32 v4, v%d, v%d, v4' % (X + 30, X + 31))
    a('v_max_u32 v4, v4, v5')
    a('s_max_u32 s45, s56, s57')
    for i in range(58, 64):
        a('s_max_u32 s45, s45, s%d' % i)
    a('v_cmp_lt_u32 vcc, s45, v4')
    a('s_bcnt1_i32_b64 s46, vcc')
    a('s_cmp_ge_u32 s46, 8')
    a('s_cbranch_scc1 k2_body')
    a('s_mov_b32 s47, 0')
    a.label('k2_rank_loop')
    a('v_cmp_lt_u32 vcc, s56, v4')
    a('s_bcnt1_i32_b64 s46, vcc')
    a('s_cmp_ge_u32 s46, 8')
    a('s_cbranch_scc1 k2_rank_next')
    a('s_mov_b32 s46, 0')
    for i in range(32):
        a('v_cmp_lt_u32 vcc, s56, v%d' % (X + i))
        a('s_bcnt1_i32_b64 s45, vcc')
        a('s_add_u32 s46, s46, s45')
    a('s_cmp_ge_u32 s46, 8')
    a('s_cbranch_scc1 k2_rank_next')
    a('s_lshl_b32 s46, s46, 2')
    a('s_add_u32 s46, s46, 0x%x' % SEL)
    a('v_mov_b32 v5, s56')
    a('v_mov_b32 v6, 0')
    a('s_mov_b64 exec, 1')
    a('buffer_store_dword v5, v6, s[4:7], s46 offen sc1')
    a('s_mov_b64 exec, -1')
    a.label('k2_rank_next')
    for i in range(56, 63):
        a('s_mov_b32 s%d, s%d' % (i, i + 1))
    a('s_add_u32 s47, s47, 1')
    a('s_cmp_lt_u32 s47, 8')
    a('s_cbranch_scc1 k2_rank_loop')
    a('s_branch k2_body')
    a.label('k2_hook4')
    stamp(a, opt, 6)
    a('s_cmp_lt_u32 s26, 28')
    a('s_cbranch_scc0 k2_body')
    a('s_cmp_eq_u32 s24, 0')
    a('s_cbranch_scc0 k2_body')
    poll_sel(a, 'v4', 'v5')
    a('v_and_b32 v4, 0x7ff, v4')
    a('v_sub_u32 v4, 0x7ff, v4')
    a('v_lshrrev_b32 v5, 4, %s' % l)
    a('v_lshlrev_b32 v6, 4, v5')
    a('v_lshl_add_u32 v4, v4, 10, v6')
    a('s_mov_b32 s46, 0x%x' % XN)
    for s in range(16):
        a('buffer_load_dwordx4 %s, v4, s[4:7], s46 offen offset:%d' % (vr(X + 4 * s, 4), s * 64))
    a('v_bfe_u32 v6, %s, 2, 2' % l)
    a('v_lshl_add_u32 v6, v5, 3, v6')
    a('v_lshlrev_b32 v6, 4, v6')
    a('v_and_b32 v7, 1, %s' % l)
    a('v_lshl_add_u32 v6, v7, 3, v6')
    a('v_bfe_u32 v7, %s, 1, 1' % l)
    a('s_movk_i32 s47, 8256')
    a('v_mad_u32_u24 v6, v7, s47, v6')
    for b in range(4):
        for s in range(4):
            for j4 in range(2):
                a('ds_read_b64_tr_b16 %s, v6 offset:%d' % (vr(WB + s * 4 + j4 * 2, 2), (b * 4 + s) * 512 + j4 * 64))
        a('s_waitcnt vmcnt(%d) lgkmcnt(0)' % (12 - 4 * b))
        for s in range(4):
            c = '0' if (b == 0 and s == 0) else vr(DD, 4)
            a('v_mfma_f32_16x16x32_bf16 %s, %s, %s, %s' % (vr(DD, 4), vr(WB + s * 4, 4), vr(X + (b * 4 + s) * 4, 4), c))
    for i in range(4):
        a('v_mov_b32 v%d, v%d' % (U + i, DD + i))
    for i in range(4):
        a('v_permlane32_swap_b32 v%d, v%d' % (DD + i, U + i))
    for i in range(4):
        bf16r(a, 'v%d' % (DD + i), 'v%d' % (DD + i))
        bf16r(a, 'v%d' % (U + i), 'v%d' % (U + i))
    for i in range(4):
        silu(a, 'v%d' % (DD + i), 'v%d' % (DD + i), 'v%d' % (U + 4 + i))
    for i in range(4):
        bf16r(a, 'v%d' % (DD + i), 'v%d' % (DD + i))
        a('v_mul_f32 v%d, v%d, v%d' % (DD + i, DD + i, U + i))
    a('v_cvt_pk_bf16_f32 v%d, v%d, v%d' % (U, DD, DD + 1))
    a('v_cvt_pk_bf16_f32 v%d, v%d, v%d' % (U + 1, DD + 2, DD + 3))
    a('v_min_u32 v%d, -2, v%d' % (U, U))
    a('v_min_u32 v%d, -2, v%d' % (U + 1, U + 1))
    a('v_and_b32 v4, 7, %s' % l)
    a('s_movk_i32 s47, 3584')
    a('v_lshlrev_b32 v5, 3, v5')
    a('v_mad_u32_u24 v4, v4, s47, v5')
    a('s_mul_i32 s45, s25, 28')
    a('s_add_u32 s45, s45, s26')
    a('s_lshl_b32 s45, s45, 4')
    a('s_add_u32 s45, s45, 0x%x' % HB)
    a('s_mov_b64 exec, 0x00ff00ff')
    a('buffer_store_dwordx2 %s, v4, s[4:7], s45 offen sc1' % vr(U, 2))
    a('s_mov_b64 exec, -1')
    a('s_branch k2_body')
    a.label('k2_hook6')
    stamp(a, opt, 7)
    a('s_cmp_lt_u32 s26, 28')
    a('s_cbranch_scc1 k2_body')
    a('v_lshrrev_b32 v5, 4, %s' % l)
    a('s_cmp_lt_u32 s24, 7')
    a('s_cbranch_scc0 k2_h6_fin')
    a('v_and_b32 v4, 7, %s' % l)
    a('s_movk_i32 s47, 3584')
    a('v_lshlrev_b32 v6, 4, v5')
    a('v_mad_u32_u24 v4, v4, s47, v6')
    a('s_lshl_b32 s45, s24, 9')
    a('s_add_u32 s45, s45, 0x%x' % HB)
    a('s_mov_b32 s48, 0')
    a.label('k2_h6_poll')
    for s in range(8):
        a('buffer_load_dwordx4 %s, v4, s[4:7], s45 offen offset:%d sc1' % (vr(X + 4 * s, 4), s * 64))
    a('s_waitcnt vmcnt(0)')
    a('v_max_u32 v6, v%d, v%d' % (X, X + 2))
    for s in range(1, 8):
        a('v_max3_u32 v6, v%d, v%d, v6' % (X + 4 * s, X + 4 * s + 2))
    a('v_cmp_eq_u32 vcc, -1, v6')
    a('s_cbranch_vccz k2_h6_go')
    a('s_sleep 4')
    a('s_add_u32 s48, s48, 1')
    a('s_cmp_lt_u32 s48, 0x10000')
    a('s_cbranch_scc1 k2_h6_poll')
    a.label('k2_h6_go')
    a('v_bfe_u32 v6, %s, 2, 2' % l)
    a('v_lshl_add_u32 v6, v5, 3, v6')
    a('v_lshlrev_b32 v6, 5, v6')
    a('v_and_b32 v7, 3, %s' % l)
    a('v_lshl_add_u32 v6, v7, 3, v6')
    a('v_lshl_add_u32 v6, s24, 13, v6')
    for b in range(2):
        for s in range(4):
            for j4 in range(2):
                a('ds_read_b64_tr_b16 %s, v6 offset:%d' % (vr(WB + s * 4 + j4 * 2, 2), (b * 4 + s) * 1024 + j4 * 128))
        a('s_waitcnt lgkmcnt(0)')
        for s in range(4):
            c = '0' if (b == 0 and s == 0) else vr(DD, 4)
            a('v_mfma_f32_16x16x32_bf16 %s, %s, %s, %s' % (vr(DD, 4), vr(WB + s * 4, 4), vr(X + (b * 4 + s) * 4, 4), c))
    a('v_lshl_add_u32 v6, s24, 10, v%d' % VL16)
    a('ds_write_b128 v6, %s offset:%d' % (vr(DD, 4), BRED))
    a('s_waitcnt lgkmcnt(0)')
    a('s_barrier')
    a('s_branch k2_body')
    a.label('k2_h6_fin')
    poll_sel(a, 'v4', 'v6')
    a('s_lshl_b32 s45, s25, 2')
    a('s_add_u32 s45, s45, s26')
    a('s_sub_u32 s45, s45, 28')
    a('v_and_b32 v6, 0x7ff, v4')
    a('v_sub_u32 v6, 0x7ff, v6')
    a('v_lshlrev_b32 v7, 3, v5')
    a('v_lshl_add_u32 v6, v6, 10, v7')
    a('s_lshl_b32 s46, s45, 5')
    a('s_add_u32 s46, s46, 0x%x' % XN)
    a('buffer_load_dwordx2 %s, v6, s[4:7], s46 offen' % vr(U, 2))
    a('v_xor_b32 v4, 0x80000000, v4')
    a('v_ashrrev_i32 v6, 31, v4')
    a('v_and_b32 v6, 0x7fff0000, v6')
    a('v_xor_b32 v4, v4, v6')
    a('v_and_b32 v4, 0xffff0000, v4')
    a('v_mul_f32 v4, %s, v4' % f2u(NLOG2E))
    a('v_exp_f32 v4, v4')
    a('v_add_f32 v4, 1.0, v4')
    a('v_rcp_f32 v4, v4')
    bf16r(a, 'v4', 'v4')
    a('s_barrier')
    for w in range(7):
        a('ds_read_b128 %s, v%d offset:%d' % (vr(X + 4 * w, 4), VL16, BRED + w * 1024))
    a('s_waitcnt vmcnt(0) lgkmcnt(0)')
    for w in range(1, 7):
        for i in range(4):
            a('v_add_f32 v%d, v%d, v%d' % (X + i, X + i, X + 4 * w + i))
    a('v_lshlrev_b32 v%d, 16, v%d' % (U + 4, U))
    a('v_and_b32 v%d, 0xffff0000, v%d' % (U + 5, U))
    a('v_lshlrev_b32 v%d, 16, v%d' % (U + 6, U + 1))
    a('v_and_b32 v%d, 0xffff0000, v%d' % (U + 7, U + 1))
    for i in range(4):
        y = 'v%d' % (X + i)
        bf16r(a, y, y)
        a('v_mul_f32 %s, %s, v4' % (y, y))
        bf16r(a, y, y)
        a('v_add_f32 %s, %s, v%d' % (y, y, U + 4 + i))
        bf16r(a, y, y)
    for i in range(4):
        silu(a, 'v%d' % (X + i), 'v%d' % (X + i), 'v%d' % (U + 8 + i))
    a('v_and_b32 v6, 7, %s' % l)
    a('v_lshlrev_b32 v7, 4, v5')
    a('v_lshl_add_u32 v6, v6, 11, v7')
    a('s_lshl_b32 s46, s45, 6')
    a('s_add_u32 s46, s46, 0x%x' % GSEL)
    a('s_mov_b32 exec_lo, 0x00ff00ff')
    a('s_mov_b32 exec_hi, 0x00ff00ff')
    a('buffer_store_dwordx4 %s, v6, s[4:7], s46 offen' % vr(X, 4))
    a('s_mov_b64 exec, -1')
    a('s_branch k2_body')
```

```python
from common import *
from k2 import silu

RED = 65536
RSTR = 272
K3_LDS = RED + 2 * 64 * RSTR

OFR = 16
ACC = 80
WF = 112
XR = 144
XNR = 152
G = 160
RD = 176
T = 208
VL = 8
K3_VGPR = 224


def gen_k3(a, opt):
    l = 'v%d' % VL
    a('s_cmp_ge_u32 s2, 256')
    a('s_cbranch_scc1 k3_end')
    stamp(a, opt, 0)
    stamp_rt(a, opt, 10)
    a('s_load_dwordx2 s[4:5], s[0:1], 80')
    a('s_load_dwordx2 s[8:9], s[0:1], 16')
    a('s_load_dwordx2 s[12:13], s[0:1], 0')
    a('s_load_dwordx2 s[16:17], s[0:1], 64')
    a('v_lshrrev_b32 v1, 6, v0')
    a('v_and_b32 %s, 63, v0' % l)
    a('v_readfirstlane_b32 s24, v1')
    a('s_mov_b32 s6, 0x%x' % WS_USED)
    a('s_mov_b32 s7, 0x20000')
    a('s_mov_b32 s10, 0x80000')
    a('s_mov_b32 s11, 0x20000')
    a('s_mov_b32 s14, 0x200000')
    a('s_mov_b32 s15, 0x20000')
    a('s_mov_b32 s18, 0x200000')
    a('s_mov_b32 s19, 0x20000')
    a('s_and_b32 s25, s2, 7')
    a('s_lshr_b32 s26, s2, 3')
    a('s_and_b32 s27, s26, 3')
    a('s_lshl_b32 s25, s25, 2')
    a('s_add_u32 s27, s27, s25')
    a('s_lshr_b32 s28, s26, 2')
    a('s_and_b32 s29, s24, 1')
    a('s_lshr_b32 s30, s24, 1')
    a('s_lshl_b32 s31, s27, 6')
    a('s_lshl_b32 s32, s24, 4')
    a('s_add_u32 s31, s31, s32')
    a('s_lshl_b32 s32, s31, 10')
    a('s_lshl_b32 s33, s28, 7')
    a('s_add_u32 s32, s32, s33')
    a('s_add_u32 s34, s32, 8192')
    a('s_add_u32 s35, s32, 0x%x' % XN)
    a('s_add_u32 s36, s34, 0x%x' % XN)
    a('v_lshrrev_b32 v2, 3, %s' % l)
    a('v_and_b32 v3, 7, %s' % l)
    a('v_lshlrev_b32 v4, 4, v3')
    a('v_lshl_add_u32 v4, v2, 10, v4')
    a('v_lshlrev_b32 v5, 2, %s' % l)
    a('v_and_b32 v5, 64, v5')
    a('v_xor_b32 v5, v4, v5')
    a('v_lshlrev_b32 v6, 4, %s' % l)
    a('s_lshl_b32 s37, s27, 1')
    a('s_add_u32 s37, s37, s29')
    a('s_lshl_b32 s37, s37, 15')
    a('s_lshl_b32 s38, s30, 14')
    a('s_add_u32 s37, s37, s38')
    a('s_add_u32 s37, s37, 0x%x' % OF)
    a('s_lshl_b32 s38, s30, 18')
    a('s_lshl_b32 s39, s29, 13')
    a('s_add_u32 s38, s38, s39')
    a('s_add_u32 s38, s38, s33')
    a('s_lshl_b32 s39, s30, 15')
    a('s_lshl_b32 s40, s29, 10')
    a('s_add_u32 s39, s39, s40')
    if opt.get('k3rot', 1):
        a('s_lshl_b32 s40, s28, 1')
    else:
        a('s_mov_b32 s40, 0')
    a('s_waitcnt lgkmcnt(0)')
    a('s_add_u32 s52, s4, 0x%x' % SEL)
    a('s_addc_u32 s53, s5, 0')
    a('s_load_dwordx8 s[56:63], s[52:53], 0')
    a('buffer_load_dwordx4 %s, v4, s[4:7], s35 offen' % vr(XNR, 4))
    a('buffer_load_dwordx4 %s, v4, s[4:7], s36 offen' % vr(XNR + 4, 4))
    for i in range(16):
        a('s_and_b32 s41, s40, 15')
        a('s_lshl_b32 s42, s41, 14')
        a('s_add_u32 s42, s42, s38')
        a('s_lshl_b32 s41, s41, 10')
        a('s_add_u32 s41, s41, s37')
        a('s_add_u32 m0, s39, %d' % (i * 2048))
        a('s_add_u32 s40, s40, 1')
        a('buffer_load_dwordx4 v5, s[8:11], s42 offen lds')
        a('buffer_load_dwordx4 %s, v6, s[4:7], s41 offen' % vr(OFR + 4 * i, 4))
    a('buffer_load_dwordx4 %s, v4, s[12:15], s32 offen' % vr(XR, 4))
    a('buffer_load_dwordx4 %s, v4, s[12:15], s34 offen' % vr(XR + 4, 4))
    a('v_lshrrev_b32 v9, 5, %s' % l)
    a('v_bfe_u32 v10, %s, 2, 2' % l)
    a('v_lshlrev_b32 v11, 9, v9')
    a('v_lshl_add_u32 v11, v10, 7, v11')
    a('v_and_b32 v12, 8, %s' % l)
    a('v_lshl_add_u32 v11, v12, 3, v11')
    a('v_and_b32 v12, 16, %s' % l)
    a('v_lshl_add_u32 v11, v12, 1, v11')
    a('v_and_b32 v12, 3, %s' % l)
    a('v_lshl_add_u32 v11, v12, 3, v11')
    a('v_lshl_add_u32 v11, s30, 15, v11')
    a('v_xor_b32 v12, 64, v11')
    a('v_and_b32 v13, 31, %s' % l)
    a('v_lshl_add_u32 v13, s29, 5, v13')
    a('s_movk_i32 s41, %d' % RSTR)
    a('v_mul_u32_u24 v13, s41, v13')
    a('v_lshl_add_u32 v13, v9, 4, v13')
    a('s_mul_i32 s42, s30, %d' % (64 * RSTR))
    a('s_add_u32 s42, s42, %d' % RED)
    a('v_add_u32 v13, s42, v13')
    a('v_lshl_add_u32 v14, s24, 4, v2')
    a('v_mul_u32_u24 v14, s41, v14')
    a('v_lshl_add_u32 v14, v3, 5, v14')
    a('v_add_u32 v14, %d, v14' % RED)
    stamp(a, opt, 1)
    a('s_waitcnt vmcnt(34)')
    stamp(a, opt, 2)
    for i in range(8):
        a('v_lshlrev_b32 v%d, 16, v%d' % (G + 2 * i, XNR + i))
        a('v_and_b32 v%d, 0xffff0000, v%d' % (G + 2 * i + 1, XNR + i))
    for i in range(16):
        a('v_mul_f32 v%d, %s, v%d' % (RD + i, f2u(NLOG2E), G + i))
    for i in range(16):
        a('v_exp_f32 v%d, v%d' % (RD + i, RD + i))
    for i in range(16):
        a('v_add_f32 v%d, 1.0, v%d' % (RD + i, RD + i))
    for i in range(16):
        a('v_rcp_f32 v%d, v%d' % (RD + i, RD + i))
    for i in range(16):
        a('v_mul_f32 v%d, v%d, v%d' % (G + i, G + i, RD + i))
    a('s_waitcnt lgkmcnt(0)')
    a('s_sub_u32 s43, 0x7ff, s31')
    a('v_sub_u32 v15, s43, v2')
    a('s_mov_b64 s[44:45], 0')
    a('s_mov_b64 s[46:47], 0')
    a('v_mov_b32 v%d, 0' % T)
    a('v_mov_b32 v%d, 0' % (T + 1))
    for k in range(8):
        a('s_and_b32 s48, s%d, 0x7ff' % (56 + k))
        a('s_add_u32 s49, s48, 8')
        a('v_cmp_eq_u32 s[50:51], s48, v15')
        a('v_cmp_eq_u32 vcc, s49, v15')
        a('v_mov_b32 v%d, %d' % (T + 2, k * 2048))
        a('s_or_b64 s[44:45], s[44:45], s[50:51]')
        a('s_or_b64 s[46:47], s[46:47], vcc')
        a('v_cndmask_b32 v%d, v%d, v%d, s[50:51]' % (T, T, T + 2))
        a('v_cndmask_b32 v%d, v%d, v%d, vcc' % (T + 1, T + 1, T + 2))
    a('s_lshl_b32 s48, s28, 8')
    a('s_add_u32 s48, s48, 0x%x' % GSEL)
    for p in range(2):
        lab = a.newlabel('k3_nosel')
        m = 's[44:45]' if p == 0 else 's[46:47]'
        a('v_lshl_add_u32 v%d, v3, 5, v%d' % (T + p, T + p))
        a('s_cmp_eq_u64 %s, 0' % m)
        a('s_cbranch_scc1 %s' % lab)
        a('s_mov_b64 exec, %s' % m)
        a('buffer_load_dwordx4 %s, v%d, s[4:7], s48 offen' % (vr(G + 8 * p, 4), T + p))
        a('buffer_load_dwordx4 %s, v%d, s[4:7], s48 offen offset:16' % (vr(G + 8 * p + 4, 4), T + p))
        a('s_mov_b64 exec, -1')
        a.label(lab)
    for gidx in range(4):
        a('s_waitcnt vmcnt(%d)' % (26 - 8 * gidx))
        a('s_barrier')
        stamp(a, opt, 3 + gidx)
        for half in range(2):
            for s in (2 * half, 2 * half + 1):
                i = gidx * 4 + s
                for ct in range(2):
                    for j4 in range(2):
                        a('ds_read_b64_tr_b16 %s, v%d offset:%d' % (vr(WF + s * 8 + ct * 4 + j4 * 2, 2), 11 + ct, i * 2048 + j4 * 1024))
        for s in range(4):
            i = gidx * 4 + s
            if s < 4:
                a('s_waitcnt lgkmcnt(%d)' % (12 - 4 * s))
            for ct in range(2):
                c = '0' if i == 0 else vr(ACC + 16 * ct, 16)
                a('v_mfma_f32_32x32x16_bf16 %s, %s, %s, %s' % (vr(ACC + 16 * ct, 16), vr(WF + s * 8 + ct * 4, 4), vr(OFR + 4 * i, 4), c))
    for ct in range(2):
        for q in range(4):
            a('ds_write_b128 v13, %s offset:%d' % (vr(ACC + 16 * ct + 4 * q, 4), ct * 128 + q * 32))
    a('s_waitcnt vmcnt(0) lgkmcnt(0)')
    a('s_barrier')
    stamp(a, opt, 7)
    for p in range(2):
        for kh in range(2):
            for h in range(2):
                a('ds_read_b128 %s, v14 offset:%d' % (vr(RD + 16 * p + 8 * kh + 4 * h, 4), p * 8 * RSTR + kh * 64 * RSTR + h * 16))
    for i in range(8):
        a('v_lshlrev_b32 v%d, 16, v%d' % (OFR + 2 * i, XR + i))
        a('v_and_b32 v%d, 0xffff0000, v%d' % (OFR + 2 * i + 1, XR + i))
    for p in range(2):
        a('s_waitcnt lgkmcnt(%d)' % (4 - 4 * p))
        for i in range(8):
            a('v_add_f32 v%d, v%d, v%d' % (RD + 16 * p + i, RD + 16 * p + i, RD + 16 * p + 8 + i))
        for i in range(8):
            a('v_fmac_f32 v%d, v%d, v%d' % (OFR + 8 * p + i, RD + 16 * p + i, G + 8 * p + i))
        for i in range(4):
            a('v_cvt_pk_bf16_f32 v%d, v%d, v%d' % (T + 4 * p + i, OFR + 8 * p + 2 * i, OFR + 8 * p + 2 * i + 1))
        a('buffer_store_dwordx4 %s, v4, s[16:19], %s offen' % (vr(T + 4 * p, 4), 's32' if p == 0 else 's34'))
    stamp(a, opt, 8)
    if opt.get('stamp'):
        a('s_waitcnt vmcnt(0)')
    stamp(a, opt, 9)
    stamp_rt(a, opt, 11)
    dbg_flush(a, opt, 2, 's24', [10, 11, 1, 3, 9], 11)
    stamp_flush(a, opt, 2, 's[4:7]', 's24', 4)
    readout(a, opt, 's[4:7]', 's24')
    a.label('k3_end')
    a('s_endpgm')
```

```python
import sys, json
from common import *
import k1, k2, k3

def build(opt):
    hdr = open('cdna_kernels/%s.s.ref' % NAME).read().split('\n')
    top = [h for h in hdr if h.startswith(';') and '@launch' not in h and 'Override' not in h and 'grid=ceil' not in h]
    a = Asm()
    names = ['qkv_proj_kernel', 'attn_moe_kernel', 'out_proj_kernel']
    body = ''
    for nm, g in zip(names, (k1.gen_k1, k2.gen_k2, k3.gen_k3)):
        a.ins.append(Ins('.globl %s' % nm)); a.ins.append(Ins('.p2align 8')); a.ins.append(Ins('.type %s,@function' % nm))
        a.label(nm)
        g(a, opt)
    a.label('code_end')
    if opt.get('nop_pre') or opt.get('nop_post'):
        a.ins.append(Ins('.globl nop_kernel')); a.ins.append(Ins('.p2align 8')); a.ins.append(Ins('.type nop_kernel,@function'))
        a.label('nop_kernel')
        a('s_endpgm')
    probs = a.check_branches()
    for p in probs:
        print('BRANCH HAZARD', p, file=sys.stderr)
    out = '\n'.join(top) + '\n'
    nop = '; @launch kernel=nop_kernel grid=(256,1,1) block=(256,1,1) lds=0\n'
    out += nop * opt.get('nop_pre', 0)
    out += '; @launch kernel=%s grid=(256,1,1) block=(256,1,1) lds=%d\n' % (names[0], k1.K1_LDS)
    out += '; @launch kernel=%s grid=(256,1,1) block=(512,1,1) lds=%d\n' % (names[1], k2.K2_LDS)
    out += '; @launch kernel=%s grid=(256,1,1) block=(256,1,1) lds=%d\n' % (names[2], k3.K3_LDS)
    out += nop * opt.get('nop_post', 0)
    out += '.amdgcn_target "amdgcn-amd-amdhsa--gfx950"\n.text\n'
    out += a.text()
    out += '.section .rodata,"a"\n'
    for nm, v in zip(names, (k1.K1_VGPR, k2.K2_VGPR, k3.K3_VGPR)):
        out += '.p2align 6\n' + kernel_desc(nm, v)
    if opt.get('nop_pre') or opt.get('nop_post'):
        out += '.p2align 6\n' + kernel_desc('nop_kernel', 8)
    return out

if __name__ == '__main__':
    opt = json.loads(sys.argv[2]) if len(sys.argv) > 2 else {}
    path = sys.argv[1] if len(sys.argv) > 1 else 'cdna_kernels/%s.s' % NAME
    open(path, 'w').write(build(opt))
    print('wrote', path)
```

```python
from common import *

LDS_W = 65536
LDS_CS = 0
LDS_RS = 1536
K1_LDS = 114688

AF = 16
WF = [32, 44]
SELR = 56
ST = 60
ACC = 64
CS = 112
VAB, VAC, VWB, VWC = 124, 128, 132, 136
VDA0, VDA1, VDW = 140, 141, 142
VL = 145
XA, XB, WR = 148, 152, 156
FA, FB = 160, 168
XNA, XNB = 176, 180
KEYV = 184
T = 186
RSV = 200
PK = 216
K1_VGPR = 232


def dma_chunk(a, sc, opt):
    a('s_add_u32 s26, %s, s21' % sc)
    a('s_and_b32 s26, s26, 7')
    a('s_and_b32 s27, %s, 3' % sc)
    a('s_mul_i32 s28, s26, %d' % (64 * 3072))
    a('s_add_u32 s28, s28, s23')
    a('s_mul_i32 s29, s27, 12288')
    a('s_add_u32 s29, s29, s33')
    a('s_lshl_b32 s30, s26, 7')
    a('s_add_u32 s30, s30, s22')
    a('s_lshl_b32 s31, s27, 14')
    a('s_add_u32 s31, s31, s32')
    for t in range(3):
        if t == 0:
            a('s_mov_b32 m0, s29')
        else:
            a('s_add_u32 m0, s29, %d' % (t * 1024))
        a('buffer_load_dwordx4 v%d, s[8:11], s28 offen lds' % (VDW + t))
    for t in range(4):
        if t == 0:
            a('s_mov_b32 m0, s31')
        else:
            a('s_add_u32 m0, s31, %d' % (t * 1024))
            a('s_add_u32 s30, s30, 8192')
        a('buffer_load_dwordx4 v%d, s[4:7], s30 offen lds' % (VDA0 + (t & 1)))


def wreads(a, tp, st):
    for ct in range(3):
        for j4 in range(2):
            a('ds_read_b64_tr_b16 %s, v%d offset:%d' % (vr(WF[st] + ct * 4 + j4 * 2, 2), VWC + tp, j4 * 768 + ct * 64))


def mainloop(a, orient, tag):
    top = 'k1_loop_' + tag
    a.label(top)
    a('s_barrier')
    wreads(a, 0, 0)
    skip = a.newlabel('k1_nodma')
    a('s_add_u32 s25, s24, 3')
    a('s_cmp_ge_u32 s25, 8')
    a('s_cbranch_scc1 %s' % skip)
    dma_chunk(a, 's25', None)
    a.label(skip)
    a('s_waitcnt lgkmcnt(6)')
    k = 0
    for tp in range(4):
        for i in range(4):
            r = AF + tp * 4 + i
            a('v_dot2c_f32_bf16 v%d, s34, v%d' % (ST + 2 * (k & 1), r))
            a('v_dot2c_f32_bf16 v%d, v%d, v%d' % (ST + 1 + 2 * (k & 1), r, r))
            k += 1
        if tp == 1:
            wreads(a, 1, 1)

    def mf(tp, ct):
        st = tp & 1
        w = vr(WF[st] + ct * 4, 4)
        x = vr(AF + tp * 4, 4)
        d = vr(ACC + ct * 16, 16)
        if orient[ct] == 'N':
            a('v_mfma_f32_32x32x16_bf16 %s, %s, %s, %s' % (d, w, x, d))
        else:
            a('v_mfma_f32_32x32x16_bf16 %s, %s, %s, %s' % (d, x, w, d))

    a('s_waitcnt lgkmcnt(6)')
    for ct in range(3):
        mf(0, ct)
    for ct in range(3):
        a('v_mfma_f32_16x16x32_bf16 %s, %s, %s, %s' % (vr(CS + ct * 4, 4), vr(SELR, 4), vr(WF[0] + ct * 4, 4), vr(CS + ct * 4, 4)))
    wreads(a, 2, 0)
    a('s_waitcnt lgkmcnt(6)')
    for ct in range(3):
        mf(1, ct)
    wreads(a, 3, 1)
    a('s_waitcnt lgkmcnt(6)')
    for ct in range(3):
        mf(2, ct)
    a('s_add_u32 s24, s24, 1')
    a('s_and_b32 s27, s24, 3')
    a('s_lshl_b32 s28, s27, 14')
    a('s_mul_i32 s29, s27, 12288')
    for tp in range(4):
        a('v_add_u32 v%d, s28, v%d' % (VAC + tp, VAB + tp))
    a('s_waitcnt lgkmcnt(0)')
    for ct in range(3):
        mf(3, ct)
    for tp in range(4):
        a('v_add_u32 v%d, s29, v%d' % (VWC + tp, VWB + tp))
    l7, l0, lgo = a.newlabel('k1_w7'), a.newlabel('k1_w0'), a.newlabel('k1_go')
    a('s_cmp_ge_u32 s24, 6')
    a('s_cbranch_scc1 %s' % l7)
    a('s_waitcnt vmcnt(14)')
    a.label(lgo)
    for tp in range(4):
        a('ds_read_b128 %s, v%d' % (vr(AF + tp * 4, 4), VAC + tp))
    a('s_branch %s' % top)
    a.label(l7)
    a('s_cmp_ge_u32 s24, 7')
    a('s_cbranch_scc1 %s' % l0)
    a('s_waitcnt vmcnt(7)')
    a('s_branch %s' % lgo)
    a.label(l0)
    a('s_waitcnt vmcnt(0)')
    a('s_cmp_lt_u32 s24, 8')
    a('s_cbranch_scc1 %s' % lgo)
    a('s_branch k1_post')


def row_ln(a, x, f, xn, sm, t0):
    pass


def gen_k1(a, opt):
    a('s_cmp_ge_u32 s2, 256')
    a('s_cbranch_scc1 k1_end')
    stamp(a, opt, 0)
    stamp_rt(a, opt, 10)
    a('s_load_dwordx2 s[4:5], s[0:1], 0')
    a('s_load_dwordx2 s[8:9], s[0:1], 8')
    a('s_load_dwordx2 s[16:17], s[0:1], 32')
    a('s_load_dwordx2 s[12:13], s[0:1], 80')
    code_prefetch(a, 'v1', 'v2', 36)
    if opt.get('desc_pf'):
        a('s_getpc_b64 s[36:37]')
        a.label('k1_dpf')
        a('s_add_u32 s36, s36, desc_start-k1_dpf')
        a('s_addc_u32 s37, s37, -1')
        a('v_and_b32 v1, 3, v0')
        a('v_lshlrev_b32 v1, 6, v1')
        a('global_load_dword v2, v1, s[36:37]')
    a('v_lshrrev_b32 v3, 6, v0')
    a('v_and_b32 v%d, 63, v0' % VL)
    a('v_readfirstlane_b32 s18, v3')
    a('s_mov_b32 s6, 0x200000')
    a('s_mov_b32 s7, 0x20000')
    a('s_mov_b32 s10, %d' % (512 * 3072))
    a('s_mov_b32 s11, 0x20000')
    a('s_mov_b32 s14, 0x%x' % WS_USED)
    a('s_mov_b32 s15, 0x20000')
    a('s_mov_b32 s34, 0x%x' % ONES_BF)
    a('s_and_b32 s25, s2, 7')
    a('s_lshr_b32 s26, s2, 3')
    a('s_lshr_b32 s19, s25, 1')
    a('s_lshl_b32 s19, s19, 2')
    a('s_and_b32 s27, s26, 3')
    a('s_add_u32 s19, s19, s27')
    a('s_and_b32 s20, s25, 1')
    a('s_lshl_b32 s20, s20, 3')
    a('s_lshr_b32 s27, s26, 2')
    a('s_add_u32 s20, s20, s27')
    if opt.get('k1rot', 1) == 1:
        a('s_lshl_b32 s21, s19, 1')
        a('s_add_u32 s21, s21, s20')
    elif opt.get('k1rot') == 2:
        a('s_xor_b32 s21, s19, s20')
        a('s_and_b32 s21, s21, 1')
        a('s_lshl_b32 s21, s21, 2')
    else:
        a('s_mov_b32 s21, 0')
    a('s_lshl_b32 s35, s19, 2')
    a('s_add_u32 s35, s35, s18')
    a('s_lshl_b32 s22, s35, 15')
    a('s_mul_i32 s23, s18, %d' % (16 * 3072))
    a('s_mul_i32 s27, s20, 192')
    a('s_add_u32 s23, s23, s27')
    a('s_lshl_b32 s32, s18, 12')
    a('s_mul_i32 s33, s18, 3072')
    a('s_add_u32 s33, s33, %d' % LDS_W)
    a('s_lshl_b32 s38, s19, 7')
    a('s_lshl_b32 s27, s20, 3')
    a('s_add_u32 s38, s38, s27')
    a('s_lshl_b32 s27, s18, 1')
    a('s_add_u32 s38, s38, s27')
    a('s_lshl_b32 s39, s38, 10')
    l = 'v%d' % VL
    a('v_lshlrev_b32 v4, 4, %s' % l)
    a('v_lshrrev_b32 v5, 3, %s' % l)
    a('v_lshrrev_b32 v6, 4, %s' % l)
    a('v_and_b32 v7, 7, %s' % l)
    a('v_xor_b32 v7, v7, v6')
    a('v_lshlrev_b32 v7, 4, v7')
    a('v_lshl_add_u32 v%d, v5, 10, v7' % VDA0)
    a('v_xor_b32 v%d, 64, v%d' % (VDA1, VDA0))
    a('s_movk_i32 s27, 0xaab')
    a('s_movk_i32 s28, %d' % (3072 - 192))
    for t in range(3):
        a('v_add_u32 v8, %d, %s' % (64 * t, l))
        a('v_mul_u32_u24 v9, s27, v8')
        a('v_lshrrev_b32 v9, 15, v9')
        a('v_lshlrev_b32 v8, 4, v8')
        a('v_mad_u32_u24 v%d, v9, s28, v8' % (VDW + t))
    a('s_waitcnt lgkmcnt(0)')
    stamp(a, opt, 1)
    a('s_add_u32 s40, s39, 1024')
    a('buffer_load_dwordx4 %s, v4, s[4:7], s39 offen' % vr(XA, 4))
    a('buffer_load_dwordx4 %s, v4, s[4:7], s40 offen' % vr(XB, 4))
    a('global_load_dwordx4 %s, v4, s[16:17]' % vr(WR, 4))
    for c in range(3):
        a('s_mov_b32 s25, %d' % c)
        dma_chunk(a, 's25', opt)
    a('v_and_b32 v8, 31, %s' % l)
    a('v_lshrrev_b32 v9, 5, %s' % l)
    a('v_bfe_u32 v10, %s, 1, 3' % l)
    a('v_xor_b32 v10, v10, v9')
    a('v_lshlrev_b32 v11, 7, v8')
    a('v_add_u32 v11, s32, v11')
    a('v_bfe_u32 v12, %s, 2, 2' % l)
    a('v_lshl_add_u32 v12, v9, 3, v12')
    a('v_mul_u32_u24 v12, 192, v12')
    a('v_and_b32 v13, 16, %s' % l)
    a('v_lshl_add_u32 v12, v13, 1, v12')
    a('v_and_b32 v13, 3, %s' % l)
    a('v_lshl_add_u32 v12, v13, 3, v12')
    for tp in range(4):
        a('s_add_u32 s27, s18, %d' % tp)
        a('s_and_b32 s27, s27, 3')
        a('s_lshl_b32 s28, s27, 1')
        a('s_mul_i32 s29, s27, 3072')
        a('s_add_u32 s29, s29, %d' % LDS_W)
        a('v_xor_b32 v13, s28, v10')
        a('v_lshl_add_u32 v%d, v13, 4, v11' % (VAB + tp))
        a('v_add_u32 v%d, s29, v12' % (VWB + tp))
        a('v_mov_b32 v%d, v%d' % (VAC + tp, VAB + tp))
        a('v_mov_b32 v%d, v%d' % (VWC + tp, VWB + tp))
    a('v_and_b32 v13, 15, %s' % l)
    a('v_and_b32 v14, 1, v6')
    a('v_cmp_eq_u32 vcc, v13, v14')
    a('v_mov_b32 v13, s34')
    for i in range(4):
        a('v_cndmask_b32 v%d, 0, v13, vcc' % (SELR + i))
    for i in range(48):
        a('v_mov_b32 v%d, 0' % (ACC + i))
    for i in range(12):
        a('v_mov_b32 v%d, 0' % (CS + i))
    for i in range(4):
        a('v_mov_b32 v%d, 0' % (ST + i))
    sa, sb = 'v%d' % T, 'v%d' % (T + 1)
    a('v_mov_b32 %s, 0' % sa)
    a('v_mov_b32 %s, 0' % sb)
    stamp(a, opt, 2)
    a('s_waitcnt vmcnt(21)')
    stamp(a, opt, 3)
    for i in range(4):
        a('v_dot2c_f32_bf16 %s, s34, v%d' % (sa, XA + i))
        a('v_dot2c_f32_bf16 %s, s34, v%d' % (sb, XB + i))
    for (x, f) in ((XA, FA), (XB, FB)):
        for i in range(4):
            a('v_lshlrev_b32 v%d, 16, v%d' % (f + 2 * i, x + i))
            a('v_and_b32 v%d, 0xffff0000, v%d' % (f + 2 * i + 1, x + i))
    wave_reduce(a, [sa, sb])
    a('v_readlane_b32 s41, %s, 63' % sa)
    a('v_readlane_b32 s42, %s, 63' % sb)
    ma, mb = 'v%d' % (T + 2), 'v%d' % (T + 3)
    a('v_mov_b32 v%d, %s' % (T + 4, f2u(1.0 / 512)))
    a('v_mul_f32 %s, s41, v%d' % (ma, T + 4))
    a('v_mul_f32 %s, s42, v%d' % (mb, T + 4))
    a('v_mov_b32 %s, 0' % sa)
    a('v_mov_b32 %s, 0' % sb)
    for i in range(8):
        a('v_sub_f32 v%d, v%d, %s' % (T + 6, FA + i, ma))
        a('v_sub_f32 v%d, v%d, %s' % (T + 7, FB + i, mb))
        a('v_fmac_f32 %s, v%d, v%d' % (sa, T + 6, T + 6))
        a('v_fmac_f32 %s, v%d, v%d' % (sb, T + 7, T + 7))
    wave_reduce(a, [sa, sb])
    bf16r(a, ma, ma)
    bf16r(a, mb, mb)
    a('v_readlane_b32 s41, %s, 63' % sa)
    a('v_readlane_b32 s42, %s, 63' % sb)
    for (f, m) in ((FA, ma), (FB, mb)):
        for i in range(8):
            a('v_sub_f32 v%d, v%d, %s' % (f + i, f + i, m))
    a('v_mul_f32 %s, s41, v%d' % (sa, T + 4))
    a('v_mul_f32 %s, s42, v%d' % (sb, T + 4))
    for s_ in (sa, sb):
        bf16r(a, s_, s_)
    for s_ in (sa, sb):
        a('v_add_f32 %s, %s, %s' % (s_, f2u(1e-5), s_))
    for s_ in (sa, sb):
        bf16r(a, s_, s_)
    for s_ in (sa, sb):
        a('v_sqrt_f32 %s, %s' % (s_, s_))
    for (f, xn) in ((FA, XNA), (FB, XNB)):
        for i in range(4):
            a('v_cvt_pk_bf16_f32 v%d, v%d, v%d' % (xn + i, f + 2 * i, f + 2 * i + 1))
    for s_ in (sa, sb):
        bf16r(a, s_, s_)
    for s_ in (sa, sb):
        a('v_rcp_f32 %s, %s' % (s_, s_))
    for (f, xn) in ((FA, XNA), (FB, XNB)):
        for i in range(4):
            a('v_lshlrev_b32 v%d, 16, v%d' % (f + 2 * i, xn + i))
            a('v_and_b32 v%d, 0xffff0000, v%d' % (f + 2 * i + 1, xn + i))
    for (f, s_) in ((FA, sa), (FB, sb)):
        for i in range(8):
            a('v_mul_f32 v%d, v%d, %s' % (f + i, f + i, s_))
    for (f, xn) in ((FA, XNA), (FB, XNB)):
        for i in range(4):
            a('v_cvt_pk_bf16_f32 v%d, v%d, v%d' % (xn + i, f + 2 * i, f + 2 * i + 1))
    a('v_mov_b32 %s, 0' % sa)
    a('v_mov_b32 %s, 0' % sb)
    for i in range(4):
        a('v_dot2c_f32_bf16 %s, v%d, v%d' % (sa, XNA + i, WR + i))
        a('v_dot2c_f32_bf16 %s, v%d, v%d' % (sb, XNB + i, WR + i))
    wave_reduce(a, [sa, sb])
    a('v_cvt_pk_bf16_f32 %s, %s, %s' % (sa, sa, sb))
    a('v_readlane_b32 s41, %s, 63' % sa)
    for (k, srcop) in ((0, 's_lshl_b32 s42, s41, 16'), (1, 's_and_b32 s42, s41, 0xffff0000')):
        a(srcop)
        a('s_ashr_i32 s43, s42, 31')
        a('s_and_b32 s43, s43, 0x7fff0000')
        a('s_xor_b32 s42, s42, s43')
        a('s_xor_b32 s42, s42, 0x80000000')
        a('s_sub_u32 s43, %d, s38' % (0x8000 + 2047 - k))
        a('s_or_b32 s42, s42, s43')
        a('v_mov_b32 v%d, s42' % (KEYV + k))
    a('s_mov_b32 s24, 0')
    stamp(a, opt, 4)
    a('s_waitcnt vmcnt(14)')
    stamp(a, opt, 5)
    for tp in range(4):
        a('ds_read_b128 %s, v%d' % (vr(AF + tp * 4, 4), VAC + tp))
    a('s_cmp_eq_u32 s20, 10')
    a('s_cbranch_scc1 k1_loop_nns')
    a('s_cmp_gt_u32 s20, 10')
    a('s_cbranch_scc1 k1_loop_sss')
    mainloop(a, 'NNN', 'nnn')
    mainloop(a, 'NNS', 'nns')
    mainloop(a, 'SSS', 'sss')
    a.label('k1_post')
    stamp(a, opt, 6)
    sm, sq, mean, var, rs = ['v%d' % (T + i) for i in range(5)]
    t0, t1 = 'v%d' % (T + 5), 'v%d' % (T + 6)
    a('s_nop 2')
    a('v_add_f32 %s, v%d, v%d' % (sm, ST, ST + 2))
    a('v_add_f32 %s, v%d, v%d' % (sq, ST + 1, ST + 3))
    a('v_mov_b32 %s, %s' % (t0, sm))
    a('v_mov_b32 %s, %s' % (t1, sq))
    a('v_permlane32_swap_b32 %s, %s' % (t0, sm))
    a('v_permlane32_swap_b32 %s, %s' % (t1, sq))
    a('v_add_f32 %s, %s, %s' % (sm, sm, t0))
    a('v_add_f32 %s, %s, %s' % (sq, sq, t1))
    a('v_mul_f32 %s, %s, %s' % (mean, f2u(1.0 / 512), sm))
    a('v_mul_f32 %s, %s, %s' % (sq, f2u(1.0 / 512), sq))
    a('v_fma_f32 %s, -%s, %s, %s' % (var, mean, mean, sq))
    a('v_mul_f32 %s, %s, %s' % (t0, f2u(1024.0), var))
    a('v_cmp_lt_f32 vcc, %s, %s' % (t0, sq))
    a('v_lshlrev_b32 v4, 4, %s' % l)
    a('v_lshl_add_u32 v5, s18, 2, v4')
    for ct in range(3):
        for hh in range(2):
            c = 'v%d' % (CS + ct * 4 + hh)
            u = 'v%d' % (CS + ct * 4 + 2 + hh)
            a('v_and_b32 %s, 0xffff0000, %s' % (u, c))
            a('v_sub_f32 %s, %s, %s' % (c, c, u))
            a('v_cvt_pk_bf16_f32 %s, %s, %s' % (c, u, c))
    a('s_mov_b64 exec, 0xffff')
    for ct in range(3):
        for hh in range(2):
            a('ds_write_b32 v5, v%d offset:%d' % (CS + ct * 4 + hh, LDS_CS + (ct * 32 + hh * 16) * 16))
    a('s_mov_b64 exec, -1')
    a('s_cbranch_vccnz k1_var2')
    a.label('k1_var_done')
    bf16r(a, var, var)
    a('v_add_f32 %s, %s, %s' % (var, f2u(1e-5), var))
    bf16r(a, var, var)
    a('v_sqrt_f32 %s, %s' % (var, var))
    a('v_cvt_pk_bf16_f32 %s, -%s, -%s' % (t1, mean, mean))
    bf16r(a, var, var)
    a('v_rcp_f32 %s, %s' % (rs, var))
    MF = AF
    a('v_cmp_gt_u32 vcc, 32, %s' % l)
    a('v_and_b32 v6, 31, %s' % l)
    a('v_lshlrev_b32 v7, 2, v6')
    a('v_lshl_add_u32 v7, s18, 7, v7')
    for i in range(4):
        a('v_cndmask_b32 v%d, 0, %s, vcc' % (MF + i, t1))
    a('ds_write_b32 v7, %s offset:%d' % (rs, LDS_RS))
    a('v_lshlrev_b32 v6, 4, v6')
    a('v_lshrrev_b32 v8, 5, %s' % l)
    a('v_lshlrev_b32 v9, 4, v8')
    a('v_lshl_add_u32 v9, s18, 7, v9')
    a('s_waitcnt lgkmcnt(0)')
    a('s_barrier')
    for ct in range(3):
        a('ds_read_b128 %s, v6 offset:%d' % (vr(WF[0] + ct * 4, 4), LDS_CS + ct * 512))
    for q in range(4):
        a('ds_read_b128 %s, v9 offset:%d' % (vr(RSV + q * 4, 4), LDS_RS + q * 32))
    a('s_add_u32 s39, s39, 0x%x' % XN)
    a('s_add_u32 s40, s39, 1024')
    a('buffer_store_dwordx4 %s, v4, s[12:15], s39 offen' % vr(XNA, 4))
    a('buffer_store_dwordx4 %s, v4, s[12:15], s40 offen' % vr(XNB, 4))
    a('s_lshl_b32 s41, s38, 2')
    a('s_add_u32 s41, s41, 0x%x' % KEY)
    a('v_mov_b32 v10, 0')
    a('v_mov_b32 v12, -1')
    a('v_mov_b32 v13, -1')
    a('s_mov_b64 exec, 1')
    a('buffer_store_dwordx2 %s, v10, s[12:15], s41 offen' % vr(KEYV, 2))
    a('s_lshl_b32 s41, s2, 7')
    a('s_lshl_b32 s42, s18, 5')
    a('s_add_u32 s41, s41, s42')
    a('s_add_u32 s41, s41, 0x%x' % HB)
    a('s_mov_b64 exec, 15')
    a('v_lshlrev_b32 v11, 3, %s' % l)
    a('buffer_store_dwordx2 v[12:13], v11, s[12:15], s41 offen')
    a('s_or_b32 s42, s2, s18')
    a('s_cmp_lg_u32 s42, 0')
    a('s_cbranch_scc1 k1_nosel')
    a('v_mov_b32 v14, 0')
    a('v_mov_b32 v15, 0')
    a('s_mov_b32 s41, 0x%x' % SEL)
    a('buffer_store_dwordx2 v[14:15], v11, s[12:15], s41 offen')
    a.label('k1_nosel')
    a('s_mov_b64 exec, -1')
    a('v_and_b32 v10, 16, %s' % l)
    a('v_lshlrev_b32 v10, 13, v10')
    a('v_lshl_add_u32 v10, v8, 9, v10')
    a('v_and_b32 v11, 15, %s' % l)
    a('v_lshl_add_u32 v10, v11, 4, v10')
    a('v_mul_f32 %s, %s, %s' % (t0, f2u(QSCALE), rs))
    a('s_mul_i32 s44, s20, 3')
    a('s_waitcnt lgkmcnt(4)')
    for ct in range(3):
        lv, ld = a.newlabel('k1_augv'), a.newlabel('k1_augd')
        d = vr(ACC + ct * 16, 16)
        a('s_cmp_ge_u32 s44, %d' % (32 - ct))
        a('s_cbranch_scc1 %s' % lv)
        a('v_mfma_f32_32x32x16_bf16 %s, %s, %s, %s' % (d, vr(WF[0] + ct * 4, 4), vr(MF, 4), d))
        a('s_branch %s' % ld)
        a.label(lv)
        a('v_mfma_f32_32x32x16_bf16 %s, %s, %s, %s' % (d, vr(MF, 4), vr(WF[0] + ct * 4, 4), d))
        a.label(ld)
    a('s_waitcnt lgkmcnt(0)')
    stamp(a, opt, 7)
    a('s_nop 7')
    for ct in range(3):
        lv, ld, lq = a.newlabel('k1_v'), a.newlabel('k1_d'), a.newlabel('k1_q')
        A0 = ACC + ct * 16
        a('s_add_u32 s45, s44, %d' % ct)
        a('s_and_b32 s46, s45, 15')
        a('s_cmp_ge_u32 s45, 32')
        a('s_cbranch_scc1 %s' % lv)
        a('s_cmp_ge_u32 s45, 16')
        a('s_cselect_b32 s47, 1, 0')
        a('s_cselect_b64 vcc, -1, 0')
        a('s_add_u32 s48, s47, 16')
        a('s_add_u32 s49, s47, 10')
        a('s_lshl_b32 s50, s46, 1')
        a('s_lshl_b32 s50, s50, s48')
        a('s_lshl_b32 s51, s35, s49')
        a('s_add_u32 s50, s50, s51')
        a('s_lshl_b32 s51, s47, 21')
        a('s_add_u32 s50, s50, s51')
        a('s_lshl_b32 s51, 1, s48')
        a('s_add_u32 s51, s51, s50')
        a('v_cndmask_b32 %s, %s, %s, vcc' % (t1, t0, rs))
        for i in range(16):
            a('v_mul_f32 v%d, v%d, %s' % (A0 + i, A0 + i, t1))
        for i in range(8):
            a('v_cvt_pk_bf16_f32 v%d, v%d, v%d' % (PK + i, A0 + 2 * i, A0 + 2 * i + 1))
        a('buffer_store_dwordx4 %s, v4, s[12:15], s50 offen' % vr(PK, 4))
        a('buffer_store_dwordx4 %s, v4, s[12:15], s51 offen' % vr(PK + 4, 4))
        a('s_cmp_eq_u32 s47, 0')
        a('s_cbranch_scc1 %s' % ld)
        na, nb = 'v%d' % (T + 8), 'v%d' % (T + 9)
        a('v_mov_b32 %s, 0' % na)
        a('v_mov_b32 %s, 0' % nb)
        for i in range(4):
            a('v_dot2c_f32_bf16 %s, v%d, v%d' % (na, PK + i, PK + i))
            a('v_dot2c_f32_bf16 %s, v%d, v%d' % (nb, PK + 4 + i, PK + 4 + i))
        a('v_permlane32_swap_b32 %s, %s' % (na, nb))
        a('v_add_f32 %s, %s, %s' % (na, na, nb))
        for s in ['quad_perm:[1,0,3,2] row_mask:0xf bank_mask:0xf', 'quad_perm:[2,3,0,1] row_mask:0xf bank_mask:0xf',
                  'row_half_mirror row_mask:0xf bank_mask:0xf', 'row_mirror row_mask:0xf bank_mask:0xf',
                  'row_bcast:15 row_mask:0xa bank_mask:0xf']:
            a('v_max_f32_dpp %s, %s, %s %s' % (na, na, na, s))
        a('s_lshl_b32 s50, s46, 9')
        a('s_lshl_b32 s51, s35, 2')
        a('s_add_u32 s50, s50, s51')
        a('s_add_u32 s50, s50, 0x%x' % KNORM)
        a('v_lshlrev_b32 %s, 8, v8' % nb)
        a('s_mov_b32 exec_lo, 0x80000000')
        a('s_mov_b32 exec_hi, 0x80000000')
        a('buffer_store_dword %s, %s, s[12:15], s50 offen' % (na, nb))
        a('s_mov_b64 exec, -1')
        a('s_branch %s' % ld)
        a.label(lv)
        a('s_lshl_b32 s50, s46, 18')
        a('s_lshl_b32 s51, s35, 11')
        a('s_add_u32 s50, s50, s51')
        a('s_add_u32 s50, s50, 0x%x' % (KV + 1024))
        for i in range(16):
            a('v_mul_f32 v%d, v%d, v%d' % (A0 + i, A0 + i, RSV + i))
        for i in range(8):
            a('v_cvt_pk_bf16_f32 v%d, v%d, v%d' % (PK + i, A0 + 2 * i, A0 + 2 * i + 1))
        a('buffer_store_dwordx4 %s, v10, s[12:15], s50 offen' % vr(PK, 4))
        a('buffer_store_dwordx4 %s, v10, s[12:15], s50 offen offset:256' % vr(PK + 4, 4))
        a.label(ld)
        a('s_nop 1')
    stamp(a, opt, 8)
    if opt.get('stamp'):
        a('s_waitcnt vmcnt(0)')
    stamp(a, opt, 9)
    stamp_rt(a, opt, 11)
    dbg_flush(a, opt, 0, 's18', [10, 11, 1, 2, 6, 9], 0)
    stamp_flush(a, opt, 0, 's[12:15]', 's18', 4)
    a.label('k1_end')
    a('s_endpgm')
    a.label('k1_var2')
    a('v_and_b32 v6, 31, %s' % l)
    a('v_lshrrev_b32 v7, 5, %s' % l)
    a('v_lshlrev_b32 v6, 10, v6')
    a('v_lshl_add_u32 v6, v7, 9, v6')
    a('s_mov_b32 s27, s22')
    a('s_add_u32 s28, s22, 512')
    a('v_mov_b32 %s, 0' % var)
    a.label('k1_var2_loop')
    a('buffer_load_dwordx4 %s, v6, s[4:7], s27 offen' % vr(AF, 4))
    a('s_waitcnt vmcnt(0)')
    for i in range(4):
        a('v_lshlrev_b32 %s, 16, v%d' % (t0, AF + i))
        a('v_and_b32 %s, 0xffff0000, v%d' % (t1, AF + i))
        a('v_sub_f32 %s, %s, %s' % (t0, t0, mean))
        a('v_sub_f32 %s, %s, %s' % (t1, t1, mean))
        a('v_fmac_f32 %s, %s, %s' % (var, t0, t0))
        a('v_fmac_f32 %s, %s, %s' % (var, t1, t1))
    a('s_add_u32 s27, s27, 16')
    a('s_cmp_lt_u32 s27, s28')
    a('s_cbranch_scc1 k1_var2_loop')
    a('v_mov_b32 %s, %s' % (t0, var))
    a('v_permlane32_swap_b32 %s, %s' % (t0, var))
    a('v_add_f32 %s, %s, %s' % (var, var, t0))
    a('v_mul_f32 %s, %s, %s' % (var, f2u(1.0 / 512), var))
    a('s_branch k1_var_done')
```

```python
import sys, json
from common import *
import k1, k2, k3

def build(opt):
    hdr = open('cdna_kernels/%s.s.ref' % NAME).read().split('\n')
    top = [h for h in hdr if h.startswith(';') and '@launch' not in h and 'Override' not in h and 'grid=ceil' not in h]
    a = Asm()
    names = ['qkv_proj_kernel', 'attn_moe_kernel', 'out_proj_kernel']
    body = ''
    names = names[:2]
    for nm, g in zip(names, (k1.gen_k1, k2.gen_k2)):
        a.ins.append(Ins('.globl %s' % nm)); a.ins.append(Ins('.p2align 8')); a.ins.append(Ins('.type %s,@function' % nm))
        a.label(nm)
        g(a, opt)
    if not opt.get('nop_in'):
        a.label('code_end')
    if opt.get('nop_pre') or opt.get('nop_post'):
        a.ins.append(Ins('.globl nop_kernel')); a.ins.append(Ins('.p2align 8')); a.ins.append(Ins('.type nop_kernel,@function'))
        a.label('nop_kernel')
        a('s_endpgm')
    if opt.get('nop_in'):
        a('s_nop 0')
        a.label('code_end')
    probs = a.check_branches()
    for p in probs:
        print('BRANCH HAZARD', p, file=sys.stderr)
    out = '\n'.join(top) + '\n'
    nop = '; @launch kernel=nop_kernel grid=(256,1,1) block=(256,1,1) lds=0\n'
    out += nop * opt.get('nop_pre', 0)
    out += ('; @launch kernel=%s grid=(256,1,1) block=(768,1,1) lds=%d\n' % (names[0], k1.K1_LDS)) * opt.get('k1_extra', 0)
    out += '; @launch kernel=%s grid=(256,1,1) block=(768,1,1) lds=%d\n' % (names[0], k1.K1_LDS)
    out += '; @launch kernel=%s grid=(256,1,1) block=(512,1,1) lds=%d\n' % (names[1], k2.K2_LDS)
    out += nop * opt.get('nop_post', 0)
    out += '.amdgcn_target "amdgcn-amd-amdhsa--gfx950"\n.text\n'
    out += a.text()
    out += '.section .rodata,"a"\n.p2align 6\ndesc_start:\n'
    for nm, v in zip(names, (k1.K1_VGPR, k2.K2_VGPR, k3.K3_VGPR)):
        out += '.p2align 6\n' + kernel_desc(nm, v)
    if opt.get('nop_pre') or opt.get('nop_post'):
        out += '.p2align 6\n' + kernel_desc('nop_kernel', 8)
    return out

if __name__ == '__main__':
    opt = json.loads(sys.argv[2]) if len(sys.argv) > 2 else {}
    path = sys.argv[1] if len(sys.argv) > 1 else 'cdna_kernels/%s.s' % NAME
    open(path, 'w').write(build(opt))
    print('wrote', path)
```

```python
from asmlib import *

NAME = 'recurrent_scan__mha_block__moe_arch_mod__prompt'
QF = 0x000000
KV = 0x200000
OF = 0x600000
XN = 0x800000
KEY = 0xA00000
KNORM = 0xA04000
SEL = 0xA06000
HB = 0xA08000
GSEL = 0xA10000
STAT = 0xA14000
WS_USED = 0xC00000
ONES_BF = 0x3f803f80
QSCALE = 0.25 * 1.4426950408889634
NLOG2E = -1.4426950408889634


def f2u(x):
    import struct
    return '0x%08x' % struct.unpack('<I', struct.pack('<f', x))[0]


def code_prefetch(a, vtmp, vdst, stmp, tid='v0', end='code_end', stride_log2=7):
    lab = a.newlabel('pf')
    a('s_getpc_b64 %s' % sr(stmp, 2))
    a.label(lab)
    a('v_lshlrev_b32 %s, %d, %s' % (vtmp, stride_log2, tid))
    a('v_min_u32 %s, %s-%s-4, %s' % (vtmp, end, lab, vtmp))
    a('global_load_dword %s, %s, %s' % (vdst, vtmp, sr(stmp, 2)))


def wave_reduce(a, regs, op='v_add_f32'):
    steps = ['quad_perm:[1,0,3,2] row_mask:0xf bank_mask:0xf',
             'quad_perm:[2,3,0,1] row_mask:0xf bank_mask:0xf',
             'row_half_mirror row_mask:0xf bank_mask:0xf',
             'row_mirror row_mask:0xf bank_mask:0xf',
             'row_bcast:15 row_mask:0xa bank_mask:0xf',
             'row_bcast:31 row_mask:0xc bank_mask:0xf']
    for s in steps:
        for r in regs:
            a('%s_dpp %s, %s, %s %s' % (op, r, r, r, s))


def bf16r(a, dst, src, tmp=None):
    a('v_cvt_pk_bf16_f32 %s, %s, %s' % (dst, src, src))
    a('v_and_b32 %s, 0xffff0000, %s' % (dst, dst))


def kernel_header(name):
    return ('.globl %s\n.p2align 8\n.type %s,@function\n%s:\n' % (name, name, name))


def kernel_desc(name, vgpr, sgpr=102):
    acc = (vgpr + 3) // 4 * 4
    return ('.amdhsa_kernel %s\n  .amdhsa_next_free_vgpr %d\n  .amdhsa_next_free_sgpr %d\n  .amdhsa_accum_offset %d\n'
            '  .amdhsa_group_segment_fixed_size 0\n  .amdhsa_kernarg_size 88\n  .amdhsa_user_sgpr_count 2\n'
            '  .amdhsa_user_sgpr_kernarg_segment_ptr 1\n  .amdhsa_system_sgpr_workgroup_id_x 1\n'
            '  .amdhsa_float_denorm_mode_32 3\n.end_amdhsa_kernel\n' % (name, vgpr, sgpr, acc))


STAMP = 0xB00000
NST = 12
def stamp(a, opt, idx):
    if not opt.get('stamp'):
        return
    a('s_memtime %s' % sr(64 + 2 * idx, 2))
    a('s_waitcnt lgkmcnt(0)')


def stamp_rt(a, opt, idx):
    if not opt.get('stamp'):
        return
    a('s_memrealtime %s' % sr(64 + 2 * idx, 2))
    a('s_waitcnt lgkmcnt(0)')


def stamp_flush(a, opt, kern, srd, swave, nw):
    if not opt.get('stamp'):
        return
    a('s_mul_i32 s90, s2, %d' % nw)
    a('s_add_u32 s90, s90, %s' % swave)
    a('s_lshl_b32 s90, s90, 6')
    a('s_add_u32 s90, s90, 0x%x' % (STAMP + kern * 0x40000))
    a('s_mov_b64 exec, 1')
    a('v_mov_b32 v1, 0')
    for i in range(NST):
        a('v_mov_b32 v2, s%d' % (64 + 2 * i))
        a('buffer_store_dword v2, v1, %s, s90 offen offset:%d' % (srd, 4 * i))
        a('s_nop 1')


def dbg_flush(a, opt, kern, swave, idxs, slot0):
    if not opt.get('dbgstamp'):
        return
    lab = a.newlabel('dbgskip')
    a('s_cmp_lg_u32 s2, %d' % opt.get('dbgwg', 0))
    a('s_cbranch_scc1 %s' % lab)
    a('s_cmp_lg_u32 %s, 0' % swave)
    a('s_cbranch_scc1 %s' % lab)
    a('s_load_dwordx2 s[92:93], s[0:1], 72')
    a('s_waitcnt lgkmcnt(0)')
    a('s_add_u32 s92, s92, %d' % (512 * (2 - kern)))
    a('s_addc_u32 s93, s93, 0')
    a('s_mov_b64 exec, 1')
    a('v_mov_b32 v1, 0')
    for k, i in enumerate(idxs):
        if i >= 10:
            a('v_mov_b32 v2, s%d' % (64 + 2 * i))
        else:
            a('s_sub_u32 s94, s%d, s64' % (64 + 2 * i))
            a('v_mov_b32 v2, s94')
        a('global_store_dword v1, v2, s[92:93] offset:%d' % (4 * (slot0 + k)))
        a('s_nop 1')
    a.label(lab)
```

```python
from common import *

LDS_W = 65536
LDS_CS = 0
LDS_RS = 1536
LDS_MF = 2048
K1_LDS = 114688

AF = 16
WF = [32, 44]
ACC = 64
VAB, VAC, VWB, VWC = 112, 116, 120, 121
VL = 122
T = 124
RSV = 140
CSR = 156
PKS = [20, 32, 44]
K1_VGPR = 168
XA, XB, WR = 96, 100, 104
FA, FB = 140, 148
XNA, XNB = 108, 112
VN = 116
GR = 118
PUB = 156
LA = 16
LU = 32
LW = 40
SELR = 52
CS = 56
SS = 68
SQ = 72
VDA0, VDA1, VDW = 76, 77, 78
LAB, LAC, LWB, LWC = 82, 86, 90, 91


def dma_setup(a, sc):
    a('s_add_u32 s26, %s, s21' % sc)
    a('s_and_b32 s26, s26, 7')
    a('s_and_b32 s27, %s, 3' % sc)
    a('s_mul_i32 s28, s26, %d' % (64 * 3072))
    a('s_add_u32 s28, s28, s23')
    a('s_mul_i32 s29, s27, 12288')
    a('s_add_u32 s29, s29, s33')
    a('s_lshl_b32 s30, s26, 7')
    a('s_add_u32 s30, s30, s22')
    a('s_lshl_b32 s31, s27, 14')
    a('s_add_u32 s31, s31, s32')


def dma_pieces():
    out = []
    for t in range(3):
        p = ['s_mov_b32 m0, s29' if t == 0 else 's_add_u32 m0, s29, %d' % (t * 1024)]
        p.append('buffer_load_dwordx4 v%d, s[8:11], s28 offen lds' % (VDW + t))
        out.append(p)
    for t in range(4):
        p = ['s_mov_b32 m0, s31'] if t == 0 else ['s_add_u32 m0, s31, %d' % (t * 1024), 's_add_u32 s30, s30, 8192']
        p.append('buffer_load_dwordx4 v%d, s[4:7], s30 offen lds' % (VDA0 + (t & 1)))
        out.append(p)
    return out


def wreads(a, t, st):
    if getattr(a, 'x_nowr', 0):
        a('s_nop 0')
        return
    for ct in range(3):
        for j4 in range(2):
            a('ds_read_b64_tr_b16 %s, v%d offset:%d' % (vr(WF[st] + ct * 4 + j4 * 2, 2), VWC, t * 3072 + j4 * 768 + ct * 64))


def chunk_ops(last=False, tail=None):
    ops = []
    for t in range(4):
        if t == 2:
            ops.append(('B',))
            if last:
                ops += tail
        for ct in range(3):
            ops.append(('M', t, ct))
            if t < 2 or not last:
                ops += [('W', (t + 2) & 3, ct, 0), ('W', (t + 2) & 3, ct, 1)]
            if not last:
                if t == 2:
                    ops.append(('A', ct))
                if t == 3 and ct == 2:
                    ops.append(('A', 3))
            if t == 0 and not last:
                if ct == 0:
                    ops += [('X', 's_add_u32 s24, s24, 1'), ('X', 's_and_b32 s27, s24, 3'), ('X', 's_lshl_b32 s28, s27, 14'),
                            ('X', 's_mul_i32 s29, s27, 12288')]
                else:
                    ops += [('X', 'v_add_u32 v%d, s28, v%d' % (VAC + 2 * ct - 2 + k, VAB + 2 * ct - 2 + k)) for k in range(2)]
            if t == 1 and ct == 2 and not last:
                ops.append(('X', 'v_add_u32 v%d, s29, v%d' % (VWC, VWB)))
    return ops


def emit_chunk(a, ops, prev, orient, opt):
    ds = [o for o in prev if o[0] in 'WAD']
    lastwait = 99
    for o in ops:
        if o[0] == 'M':
            t, ct = o[1], o[2]
            pos = max(max(k for k, d in enumerate(ds) if d[:3] == ('W', t, ct)), max(k for k, d in enumerate(ds) if d == ('A', t)))
            n = len(ds) - 1 - pos
            if n < lastwait:
                a('s_waitcnt lgkmcnt(%d)' % min(n, 15))
                lastwait = n
            w, x, d = vr(WF[t & 1] + ct * 4, 4), vr(AF + t * 4, 4), vr(ACC + ct * 16, 16)
            if orient[ct] in 'NQK':
                a('v_mfma_f32_32x32x16_bf16 %s, %s, %s, %s' % (d, w, x, d))
            else:
                a('v_mfma_f32_32x32x16_bf16 %s, %s, %s, %s' % (d, x, w, d))
        elif o[0] == 'W':
            t, ct, j4 = o[1:4]
            a('ds_read_b64_tr_b16 %s, v%d offset:%d' % (vr(WF[t & 1] + ct * 4 + j4 * 2, 2), VWC, t * 3072 + j4 * 768 + ct * 64))
            ds.append(o)
            lastwait += 1
        elif o[0] == 'A':
            a('ds_read_b128 %s, v%d' % (vr(AF + o[1] * 4, 4), VAC + o[1]))
            ds.append(o)
            lastwait += 1
        elif o[0] == 'D':
            a(o[1])
            ds.append(o)
            lastwait += 1
        elif o[0] == 'B':
            a('s_barrier')
        else:
            a(o[1])
    return ds


def mainloop(a, orient, tag, opt):
    top = 'k1_loop_' + tag
    a.label(top)
    emit_chunk(a, chunk_ops(), chunk_ops(), orient, opt)
    a('s_cmp_lt_u32 s24, 7')
    a('s_cbranch_scc1 %s' % top)


def epilogue(a, types, tag, opt):
    l = 'v%d' % VL
    MF = AF
    rs, rq = T, T + 2
    a.label('k1_epi_' + tag)

    CSF = RSV - 0
    tail = [('D', 'ds_read_b32 v%d, v7 offset:%d' % (T + 4, LDS_MF))]
    tail += [('D', 'ds_read_b128 %s, v6 offset:%d' % (vr(CSR + ct * 4, 4), LDS_CS + ct * 512)) for ct in range(3)]
    tail += [('D', 'ds_read_b32 v%d, v7 offset:%d' % (rs, LDS_RS))]
    if 'V' in types:
        tail += [('D', 'ds_read_b128 %s, v9 offset:%d' % (vr(RSV + q * 4, 4), LDS_RS + q * 32)) for q in range(4)]
    ops = chunk_ops(True, tail)
    k = [n for n, o in enumerate(ops) if o == ('M', 3, 0)][0]
    ops[k:k] = [('X', 's_waitcnt lgkmcnt(0)')] + [('X', 'v_cndmask_b32 v%d, 0, v%d, s[36:37]' % (MF + i, T + 4)) for i in range(4)]
    if opt.get('stamp'):
        k = ops.index(('B',))
        ops[k:k + 1] = [('X', 's_memtime s[74:75]'), ('X', 's_waitcnt lgkmcnt(0)'), ('B',), ('X', 's_memtime s[76:77]'), ('X', 's_waitcnt lgkmcnt(0)')]
        stamp(a, opt, 4)
    emit_chunk(a, ops, chunk_ops(), types, opt)
    for ct in range(3):
        d = vr(ACC + ct * 16, 16)
        if types[ct] == 'V':
            a('v_mfma_f32_32x32x16_bf16 %s, %s, %s, %s' % (d, vr(MF, 4), vr(CSR + ct * 4, 4), d))
        else:
            a('v_mfma_f32_32x32x16_bf16 %s, %s, %s, %s' % (d, vr(CSR + ct * 4, 4), vr(MF, 4), d))
    if 'Q' in types:
        a('v_mul_f32 v%d, %s, v%d' % (rq, f2u(QSCALE), rs))
    stamp(a, opt, 7)
    for ct in range(3):
        A0 = ACC + ct * 16
        P = PKS[ct]
        ty = types[ct]
        a('s_add_u32 s45, s44, %d' % ct)
        a('s_and_b32 s45, s45, 15')
        if ty == 'Q':
            a('s_lshl_b32 s50, s45, 17')
            a('s_lshl_b32 s51, s35, 10')
            a('s_add_u32 s50, s50, s51')
            a('s_add_u32 s51, s50, 0x10000')
        else:
            a('s_lshl_b32 s50, s45, 18')
            a('s_lshl_b32 s51, s35, 11')
            a('s_add_u32 s50, s50, s51')
            a('s_add_u32 s50, s50, 0x%x' % (KV + (1024 if ty == 'V' else 0)))
            a('s_add_u32 s51, s50, 0x20000')
        for i in range(8):
            if ty == 'V':
                a('v_pk_mul_f32 %s, %s, %s' % (vr(A0 + 2 * i, 2), vr(A0 + 2 * i, 2), vr(RSV + 2 * i, 2)))
            else:
                a('v_pk_mul_f32 %s, %s, %s op_sel_hi:[1,0]' % (vr(A0 + 2 * i, 2), vr(A0 + 2 * i, 2), vr(rq if ty == 'Q' else rs, 2)))
        for i in range(8):
            a('v_cvt_pk_bf16_f32 v%d, v%d, v%d' % (P + i, A0 + 2 * i, A0 + 2 * i + 1))
        fl = opt.get('k1st', 'sc1')
        if ty == 'V':
            a('buffer_store_dwordx4 %s, v10, s[12:15], s50 offen %s' % (vr(P, 4), fl))
            a('buffer_store_dwordx4 %s, v10, s[12:15], s50 offen offset:256 %s' % (vr(P + 4, 4), fl))
        else:
            a('buffer_store_dwordx4 %s, v4, s[12:15], s50 offen %s' % (vr(P, 4), fl))
            a('buffer_store_dwordx4 %s, v4, s[12:15], s51 offen %s' % (vr(P + 4, 4), fl))
    ks = [ct for ct in range(3) if types[ct] == 'K']
    if ks:
        for ct in ks:
            a('v_mov_b32 v%d, 0' % (T + 6 + 2 * ct))
            a('v_mov_b32 v%d, 0' % (T + 7 + 2 * ct))
        for i in range(4):
            for ct in ks:
                P = PKS[ct]
                a('v_dot2c_f32_bf16 v%d, v%d, v%d' % (T + 6 + 2 * ct, P + i, P + i))
                a('v_dot2c_f32_bf16 v%d, v%d, v%d' % (T + 7 + 2 * ct, P + 4 + i, P + 4 + i))
        for ct in ks:
            a('v_permlane32_swap_b32 v%d, v%d' % (T + 6 + 2 * ct, T + 7 + 2 * ct))
        for ct in ks:
            a('v_add_f32 v%d, v%d, v%d' % (T + 6 + 2 * ct, T + 6 + 2 * ct, T + 7 + 2 * ct))
        for s in ['quad_perm:[1,0,3,2] row_mask:0xf bank_mask:0xf', 'quad_perm:[2,3,0,1] row_mask:0xf bank_mask:0xf',
                  'row_half_mirror row_mask:0xf bank_mask:0xf', 'row_mirror row_mask:0xf bank_mask:0xf',
                  'row_bcast:15 row_mask:0xa bank_mask:0xf']:
            for ct in ks:
                r = 'v%d' % (T + 6 + 2 * ct)
                a('v_max_f32_dpp %s, %s, %s %s' % (r, r, r, s))
        a('s_add_u32 s45, s44, %d' % ks[0])
        a('s_and_b32 s45, s45, 15')
        a('s_lshl_b32 s50, s45, 9')
        a('s_lshl_b32 s51, s35, 2')
        a('s_add_u32 s50, s50, s51')
        a('s_add_u32 s50, s50, 0x%x' % KNORM)
        a('s_mov_b32 exec_lo, 0x80000000')
        a('s_mov_b32 exec_hi, 0x80000000')
        for n, ct in enumerate(ks):
            a('buffer_store_dword v%d, v11, s[12:15], s50 offen offset:%d' % (T + 6 + 2 * ct, 512 * n))
    stamp(a, opt, 8)
    if opt.get('stamp'):
        a('s_waitcnt vmcnt(0)')
    stamp(a, opt, 9)
    stamp_rt(a, opt, 11)
    dbg_flush(a, opt, 0, 's18', [10, 11, 1, 2, 6, 9], 0)
    stamp_flush(a, opt, 0, 's[12:15]', 's17', 12)
    a('s_endpgm')


def mini_job(a, opt, bar):
    l = 'v%d' % VL
    sa, sb = 'v%d' % T, 'v%d' % (T + 1)
    a('v_mov_b32 %s, 0' % sa)
    a('v_mov_b32 %s, 0' % sb)
    for i in range(4):
        a('v_dot2c_f32_bf16 %s, s34, v%d' % (sa, XA + i))
        a('v_dot2c_f32_bf16 %s, s34, v%d' % (sb, XB + i))
    for (x, f) in ((XA, FA), (XB, FB)):
        for i in range(4):
            a('v_lshlrev_b32 v%d, 16, v%d' % (f + 2 * i, x + i))
            a('v_and_b32 v%d, 0xffff0000, v%d' % (f + 2 * i + 1, x + i))
    wave_reduce(a, [sa, sb])
    a('v_readlane_b32 s41, %s, 63' % sa)
    a('v_readlane_b32 s42, %s, 63' % sb)
    ma, mb = 'v%d' % (T + 2), 'v%d' % (T + 3)
    a('v_mov_b32 v%d, %s' % (T + 4, f2u(1.0 / 512)))
    a('v_mul_f32 %s, s41, v%d' % (ma, T + 4))
    a('v_mul_f32 %s, s42, v%d' % (mb, T + 4))
    a('v_mov_b32 %s, 0' % sa)
    a('v_mov_b32 %s, 0' % sb)
    for i in range(8):
        a('v_sub_f32 v%d, v%d, %s' % (T + 6, FA + i, ma))
        a('v_sub_f32 v%d, v%d, %s' % (T + 7, FB + i, mb))
        a('v_fmac_f32 %s, v%d, v%d' % (sa, T + 6, T + 6))
        a('v_fmac_f32 %s, v%d, v%d' % (sb, T + 7, T + 7))
    bar(2)
    wave_reduce(a, [sa, sb])
    bf16r(a, ma, ma)
    bf16r(a, mb, mb)
    a('v_readlane_b32 s41, %s, 63' % sa)
    a('v_readlane_b32 s42, %s, 63' % sb)
    for (f, m) in ((FA, ma), (FB, mb)):
        for i in range(8):
            a('v_sub_f32 v%d, v%d, %s' % (f + i, f + i, m))
    a('v_mul_f32 %s, s41, v%d' % (sa, T + 4))
    a('v_mul_f32 %s, s42, v%d' % (sb, T + 4))
    for s_ in (sa, sb):
        bf16r(a, s_, s_)
    for s_ in (sa, sb):
        a('v_add_f32 %s, %s, %s' % (s_, f2u(1e-5), s_))
    for s_ in (sa, sb):
        bf16r(a, s_, s_)
    for s_ in (sa, sb):
        a('v_sqrt_f32 %s, %s' % (s_, s_))
    for (f, xn) in ((FA, XNA), (FB, XNB)):
        for i in range(4):
            a('v_cvt_pk_bf16_f32 v%d, v%d, v%d' % (xn + i, f + 2 * i, f + 2 * i + 1))
    for s_ in (sa, sb):
        bf16r(a, s_, s_)
    a('v_lshrrev_b32 v%d, 16, %s' % (PUB, ma))
    a('v_lshrrev_b32 v%d, 16, %s' % (PUB + 2, mb))
    a('v_or_b32 v%d, v%d, %s' % (PUB, PUB, sa))
    a('v_or_b32 v%d, v%d, %s' % (PUB + 2, PUB + 2, sb))
    for s_ in (sa, sb):
        a('v_rcp_f32 %s, %s' % (s_, s_))
    bar(3)
    for (f, xn) in ((FA, XNA), (FB, XNB)):
        for i in range(4):
            a('v_lshlrev_b32 v%d, 16, v%d' % (f + 2 * i, xn + i))
            a('v_and_b32 v%d, 0xffff0000, v%d' % (f + 2 * i + 1, xn + i))
    for (f, s_) in ((FA, sa), (FB, sb)):
        for i in range(8):
            a('v_mul_f32 v%d, v%d, %s' % (f + i, f + i, s_))
    for (f, xn) in ((FA, XNA), (FB, XNB)):
        for i in range(4):
            a('v_cvt_pk_bf16_f32 v%d, v%d, v%d' % (xn + i, f + 2 * i, f + 2 * i + 1))
    bar(4)
    a('v_mov_b32 %s, 0' % sa)
    a('v_mov_b32 %s, 0' % sb)
    for i in range(4):
        a('v_dot2c_f32_bf16 %s, v%d, v%d' % (sa, XNA + i, WR + i))
        a('v_dot2c_f32_bf16 %s, v%d, v%d' % (sb, XNB + i, WR + i))
    wave_reduce(a, [sa, sb])
    a('v_cvt_pk_bf16_f32 %s, %s, %s' % (sa, sa, sb))
    bar(5)
    a('v_readlane_b32 s41, %s, 63' % sa)
    for (k, srcop) in ((0, 's_lshl_b32 s42, s41, 16'), (1, 's_and_b32 s42, s41, 0xffff0000')):
        a(srcop)
        a('s_ashr_i32 s43, s42, 31')
        a('s_and_b32 s43, s43, 0x7fff0000')
        a('s_xor_b32 s42, s42, s43')
        a('s_xor_b32 s42, s42, 0x80000000')
        a('s_sub_u32 s43, %d, s38' % (0x8000 + 2047 - k))
        a('s_or_b32 s42, s42, s43')
        a('v_mov_b32 v%d, s42' % (T + 2 + k))


def mini_stores(a, opt):
    a('s_add_u32 s39, s39, 0x%x' % XN)
    a('s_add_u32 s40, s39, 1024')
    a('buffer_store_dwordx4 %s, v4, s[12:15], s39 offen sc1' % vr(XNA, 4))
    a('buffer_store_dwordx4 %s, v4, s[12:15], s40 offen sc1' % vr(XNB, 4))
    a('s_lshl_b32 s41, s38, 2')
    a('s_add_u32 s41, s41, 0x%x' % KEY)
    a('s_mov_b64 exec, 1')
    a('buffer_store_dwordx2 %s, v3, s[12:15], s41 offen sc1' % vr(T + 2, 2))
    a('s_mov_b64 exec, -1')


def reset_handoffs(a, opt):
    l = 'v%d' % VL
    a('v_mov_b32 v12, -1')
    a('v_mov_b32 v13, -1')
    a('v_mov_b32 v14, 0')
    a('v_mov_b32 v15, 0')
    a('v_lshlrev_b32 v5, 3, %s' % l)
    a('s_lshl_b32 s41, s2, 7')
    a('s_lshl_b32 s42, s18, 5')
    a('s_add_u32 s41, s41, s42')
    a('s_add_u32 s41, s41, 0x%x' % HB)
    a('s_mov_b64 exec, 15')
    a('buffer_store_dwordx2 v[12:13], v5, s[12:15], s41 offen')
    a('s_or_b32 s42, s2, s18')
    a('s_cmp_lg_u32 s42, 0')
    a('s_cbranch_scc1 k1_nosel')
    a('s_mov_b32 s41, 0x%x' % SEL)
    a('buffer_store_dwordx2 v[14:15], v5, s[12:15], s41 offen')
    a.label('k1_nosel')
    a('s_mov_b64 exec, -1')


def gen_dma(a, opt):
    l = 'v%d' % VL
    a.label('k1_dma')
    a('v_lshrrev_b32 v5, 3, %s' % l)
    a('v_lshrrev_b32 v6, 4, %s' % l)
    a('v_and_b32 v7, 7, %s' % l)
    a('v_xor_b32 v7, v7, v6')
    a('v_lshlrev_b32 v7, 4, v7')
    a('v_lshl_add_u32 v%d, v5, 10, v7' % VDA0)
    a('v_xor_b32 v%d, 64, v%d' % (VDA1, VDA0))
    a('s_movk_i32 s27, 0xaab')
    a('s_movk_i32 s28, %d' % (3072 - 192))
    for t in range(3):
        a('v_add_u32 v8, %d, %s' % (64 * t, l))
        a('v_mul_u32_u24 v9, s27, v8')
        a('v_lshrrev_b32 v9, 15, v9')
        a('v_lshlrev_b32 v8, 4, v8')
        a('v_mad_u32_u24 v%d, v9, s28, v8' % (VDW + t))
    a('s_mul_i32 s23, s18, %d' % (16 * 3072))
    a('s_mul_i32 s27, s20, 192')
    a('s_add_u32 s23, s23, s27')
    a('s_mul_i32 s33, s18, 3072')
    a('s_add_u32 s33, s33, %d' % LDS_W)
    a('s_mov_b32 s24, 0')
    a('s_mov_b32 s48, s25')
    a('s_mov_b32 s49, s26')
    a('s_waitcnt lgkmcnt(0)')
    stamp(a, opt, 1)

    NS = opt.get('k1ns', 4)

    def issue(c):
        if opt.get('k1rot', 0):
            a('s_mov_b32 s25, %d' % c)
            dma_setup(a, 's25')
            for p in dma_pieces():
                for x in p:
                    a(x)
            return
        st = c % NS
        a('s_add_u32 s28, s23, %d' % (c * 64 * 3072))
        for t in range(3):
            a('s_add_u32 m0, s33, %d' % (st * 12288 + t * 1024))
            a('buffer_load_dwordx4 v%d, s[8:11], s28 offen lds' % (VDW + t))
        for t in range(4):
            a('s_add_u32 m0, s32, %d' % (st * 16384 + t * 1024))
            a('s_add_u32 s30, s22, %d' % (c * 128 + t * 8192))
            a('buffer_load_dwordx4 v%d, s[4:7], s30 offen lds' % (VDA0 + (t & 1)))
    issue(0)
    issue(1)
    nxt = 2
    for k in range(8):
        a('s_waitcnt vmcnt(%d)' % (7 * (nxt - k - 1)))
        a('s_barrier')
        stamp(a, opt, 2 + k)
        lim = min(8, max(k + NS - 1, NS if opt.get('k1boost', 1) else 0))
        while nxt < lim:
            if nxt == 7:
                reset_handoffs(a, opt)
            issue(nxt)
            nxt += 1
    if opt.get('stamp'):
        a('s_barrier')
    stamp_rt(a, opt, 11)
    stamp_flush(a, opt, 0, 's[12:15]', 's17', 12)
    a('s_endpgm')


def a_read_addr(a, base, cur, l):
    a('v_and_b32 v8, 31, %s' % l)
    a('v_lshrrev_b32 v9, 5, %s' % l)
    a('v_bfe_u32 v10, %s, 1, 3' % l)
    a('v_xor_b32 v10, v10, v9')
    a('v_lshlrev_b32 v11, 7, v8')
    a('v_add_u32 v11, s32, v11')
    for tp in range(4):
        a('v_xor_b32 v13, %d, v10' % (2 * tp))
        a('v_lshl_add_u32 v%d, v13, 4, v11' % (base + tp))
        a('v_mov_b32 v%d, v%d' % (cur + tp, base + tp))


def w_read_addr(a, base, cur, l, sbase):
    a('v_bfe_u32 v12, %s, 2, 2' % l)
    a('v_lshl_add_u32 v12, v9, 3, v12')
    a('v_mul_u32_u24 v12, 192, v12')
    a('v_and_b32 v13, 16, %s' % l)
    a('v_lshl_add_u32 v12, v13, 1, v12')
    a('v_and_b32 v13, 3, %s' % l)
    a('v_lshl_add_u32 v12, v13, 3, v12')
    a('v_add_u32 v%d, %s, v12' % (base, sbase))
    a('v_mov_b32 v%d, v%d' % (cur, base))


def colsum_chunk(a, opt):
    for ct in range(3):
        for j4 in range(2):
            a('ds_read_b64_tr_b16 %s, v%d offset:%d' % (vr(LW + ct * 4 + j4 * 2, 2), LWC, j4 * 768 + ct * 64))
    a('s_add_u32 s24, s24, 1')
    a('s_and_b32 s46, s24, 3')
    a('s_mul_i32 s46, s46, 12288')
    a('v_add_u32 v%d, s46, v%d' % (LWC, LWB))
    a('s_waitcnt lgkmcnt(0)')
    for ct in range(3):
        a('v_mfma_f32_16x16x32_bf16 %s, %s, %s, %s' % (vr(CS + ct * 4, 4), vr(SELR, 4), vr(LW + ct * 4, 4), vr(CS + ct * 4, 4)))


POLLS = 0x4000


def touch(a, opt):
    l = 'v%d' % VL
    a('s_lshr_b32 s27, s25, 1')
    a('s_lshl_b32 s27, s27, 9')
    a('s_lshl_b32 s28, s26, 4')
    a('s_add_u32 s27, s27, s28')
    a('s_lshl_b32 s27, s27, 10')
    a('s_lshl_b32 s28, s18, 7')
    a('s_add_u32 s27, s27, s28')
    a('s_add_u32 s27, s27, 512')
    a('v_lshlrev_b32 v10, 10, %s' % l)
    a('s_and_b32 s28, s25, 1')
    a('s_mul_i32 s28, s28, 1536')
    a('s_mul_i32 s29, s26, 6144')
    a('s_add_u32 s28, s28, s29')
    a('s_add_u32 s29, s18, 4')
    a('s_mul_i32 s29, s29, %d' % (64 * 3072))
    a('s_add_u32 s28, s28, s29')
    a('v_cmp_le_u32 vcc, 12, %s' % l)
    a('v_mov_b32 v11, %d' % (3072 - 1536))
    a('v_cndmask_b32 v11, 0, v11, vcc')
    a('v_lshl_add_u32 v11, %s, 7, v11' % l)
    a('s_mov_b64 exec, 0xffff')
    a('buffer_load_dword v94, v10, s[4:7], s27 offen')
    a('s_mov_b64 exec, 0xffffff')
    a('buffer_load_dword v95, v11, s[8:11], s28 offen')
    a('s_mov_b64 exec, -1')


def gen_aux(a, opt):
    l = 'v%d' % VL
    a.label('k1_aux')
    a('s_lshl_b32 s38, s19, 7')
    a('s_lshl_b32 s27, s20, 3')
    a('s_add_u32 s38, s38, s27')
    a('s_lshl_b32 s27, s18, 1')
    a('s_add_u32 s38, s38, s27')
    a('s_lshl_b32 s39, s38, 10')
    a('s_add_u32 s40, s39, 1024')
    a('v_lshlrev_b32 v4, 4, %s' % l)
    a('v_mov_b32 v3, 0')
    a('s_or_b32 s42, s2, s18')
    a('s_waitcnt lgkmcnt(0)')
    a('s_cmp_lg_u32 s42, 0')
    a('s_cbranch_scc1 k1_nononce')
    a('s_or_b32 s56, s56, 1')
    a('v_mov_b32 v5, s56')
    a('s_mov_b64 exec, 1')
    a('global_store_dword v3, v5, s[54:55] sc1')
    a('s_mov_b64 exec, -1')
    a.label('k1_nononce')
    a('buffer_load_dwordx4 %s, v4, s[4:7], s39 offen' % vr(XA, 4))
    a('buffer_load_dwordx4 %s, v4, s[4:7], s40 offen' % vr(XB, 4))
    a('global_load_dwordx4 %s, v4, s[52:53]' % vr(WR, 4))
    a('s_mul_i32 s33, s18, 3072')
    a('s_add_u32 s33, s33, %d' % LDS_W)
    a('v_lshrrev_b32 v9, 5, %s' % l)
    w_read_addr(a, LWB, LWC, l, 's33')
    a('v_and_b32 v13, 15, %s' % l)
    a('v_bfe_u32 v14, %s, 4, 1' % l)
    a('v_cmp_eq_u32 vcc, v13, v14')
    a('v_mov_b32 v13, s34')
    for i in range(4):
        a('v_cndmask_b32 v%d, 0, v13, vcc' % (SELR + i))
    for i in range(CS, CS + 12):
        a('v_mov_b32 v%d, 0' % i)
    a('v_and_b32 v6, 31, %s' % l)
    a('v_lshlrev_b32 v7, 2, v6')
    a('v_lshl_add_u32 v7, s18, 7, v7')
    a('v_lshlrev_b32 v8, 3, v6')
    a('v_lshl_add_u32 v9, s18, 2, v4')
    a('s_lshl_b32 s47, s35, 8')
    a('s_add_u32 s47, s47, 0x%x' % STAT)
    a('s_mov_b32 s24, 0')
    a('s_waitcnt vmcnt(0)')
    stamp(a, opt, 1)

    a('s_mov_b32 s49, 0')
    a('s_lshl_b32 s50, s38, 3')
    a('s_add_u32 s50, s50, 0x%x' % STAT)

    def try_publish(block):
        done, again, got = a.newlabel('k1_pubd'), a.newlabel('k1_puba'), a.newlabel('k1_pubg')
        a('s_cmp_lg_u32 s49, 0')
        a('s_cbranch_scc1 %s' % done)
        a('s_mov_b32 s48, 0')
        a.label(again)
        a('s_waitcnt vmcnt(0)')
        a('v_readfirstlane_b32 s49, v%d' % VN)
        a('s_cmp_lg_u32 s49, 0')
        a('s_cbranch_scc1 %s' % got)
        a('global_load_dword v%d, v3, s[54:55] sc1' % VN)
        if block:
            a('s_add_u32 s48, s48, 1')
            a('s_cmp_lt_u32 s48, %d' % POLLS)
            a('s_cbranch_scc1 %s' % again)
        a('s_branch %s' % done)
        a.label(got)
        a('v_mov_b32 v%d, s49' % (PUB + 1))
        a('v_mov_b32 v%d, s49' % (PUB + 3))
        a('s_mov_b64 exec, 1')
        a('buffer_store_dwordx4 %s, v3, s[12:15], s50 offen sc1' % vr(PUB, 4))
        a('s_mov_b64 exec, -1')
        stamp(a, opt, 3)
        a.label(done)

    def bar(k):
        if k == 2:
            a('global_load_dword v%d, v3, s[54:55] sc1' % VN)
            stamp(a, opt, 2)
        if k >= 3:
            try_publish(False)
        a('s_barrier')
        if opt.get('k1pf', 0) == k:
            touch(a, opt)
        colsum_chunk(a, opt)
    mini_job(a, opt, bar)
    stamp(a, opt, 4)
    try_publish(True)
    a('s_barrier')
    colsum_chunk(a, opt)
    a('s_barrier')
    colsum_chunk(a, opt)
    a('buffer_load_dwordx2 %s, v8, s[12:15], s47 offen sc1' % vr(GR, 2))
    a('s_barrier')
    colsum_chunk(a, opt)
    a('s_mov_b32 s48, 0')
    a.label('k1_gpoll')
    a('s_waitcnt vmcnt(0)')
    a('v_cmp_ne_u32 vcc, s49, v%d' % (GR + 1))
    a('s_cbranch_vccz k1_ggot')
    a('buffer_load_dwordx2 %s, v8, s[12:15], s47 offen sc1' % vr(GR, 2))
    a('s_add_u32 s48, s48, 1')
    a('s_cmp_lt_u32 s48, %d' % POLLS)
    a('s_cbranch_scc1 k1_gpoll')
    a('s_branch k1_local')
    a.label('k1_ggot')
    a('s_cmp_eq_u32 s49, 0')
    a('s_cbranch_scc1 k1_local')
    if opt.get('force_local'):
        a('s_branch k1_local')
    a.label('k1_have')
    a('v_and_b32 v10, 0xffff0000, v%d' % GR)
    a('v_and_b32 v11, 0xffff, v%d' % GR)
    a('v_rcp_f32 v10, v10')
    a('v_xor_b32 v11, 0x8000, v11')
    a('v_lshl_or_b32 v11, v11, 16, v11')
    a('ds_write_b32 v7, v10 offset:%d' % LDS_RS)
    a('ds_write_b32 v7, v11 offset:%d' % LDS_MF)
    mini_stores(a, opt)
    stamp(a, opt, 5)
    a('s_barrier')
    colsum_chunk(a, opt)
    for step in range(3):
        for ct in range(3):
            for hh in range(2):
                c = 'v%d' % (CS + ct * 4 + hh)
                u = 'v%d' % (CS + ct * 4 + 2 + hh)
                a(['v_and_b32 %s, 0xffff0000, %s' % (u, c), 'v_sub_f32 %s, %s, %s' % (c, c, u),
                   'v_cvt_pk_bf16_f32 %s, %s, %s' % (c, u, c)][step])
    a('s_mov_b64 exec, 0xffff')
    for ct in range(3):
        for hh in range(2):
            a('ds_write_b32 v9, v%d offset:%d' % (CS + ct * 4 + hh, LDS_CS + (ct * 32 + hh * 16) * 16))
    a('s_waitcnt lgkmcnt(0)')
    stamp(a, opt, 6)
    a('s_barrier')
    stamp(a, opt, 9)
    stamp_rt(a, opt, 11)
    stamp_flush(a, opt, 0, 's[12:15]', 's17', 12)
    a('s_endpgm')
    a.label('k1_local')
    mean, var, t0, t1 = 'v10', 'v11', 'v12', 'v13'
    a('s_waitcnt vmcnt(0)')
    a('v_lshrrev_b32 v14, 5, %s' % l)
    a('v_lshlrev_b32 v15, 10, v6')
    a('v_lshl_add_u32 v15, v14, 9, v15')
    a('v_mov_b32 %s, 0' % mean)
    for ps in range(2):
        acc = 'v14'
        a('v_mov_b32 %s, 0' % acc)
        a('s_mov_b32 s27, s22')
        a('s_add_u32 s28, s22, 512')
        a.label('k1_loc_%d' % ps)
        a('buffer_load_dwordx4 %s, v15, s[4:7], s27 offen' % vr(XA, 4))
        a('s_waitcnt vmcnt(0)')
        for i in range(4):
            a('v_lshlrev_b32 %s, 16, v%d' % (t0, XA + i))
            a('v_and_b32 %s, 0xffff0000, v%d' % (t1, XA + i))
            if ps == 0:
                a('v_add_f32 %s, %s, %s' % (acc, acc, t0))
                a('v_add_f32 %s, %s, %s' % (acc, acc, t1))
            else:
                a('v_sub_f32 %s, %s, %s' % (t0, t0, mean))
                a('v_sub_f32 %s, %s, %s' % (t1, t1, mean))
                a('v_fmac_f32 %s, %s, %s' % (acc, t0, t0))
                a('v_fmac_f32 %s, %s, %s' % (acc, t1, t1))
        a('s_add_u32 s27, s27, 16')
        a('s_cmp_lt_u32 s27, s28')
        a('s_cbranch_scc1 k1_loc_%d' % ps)
        a('v_mov_b32 %s, %s' % (t0, acc))
        a('v_permlane32_swap_b32 %s, %s' % (t0, acc))
        a('v_add_f32 %s, %s, %s' % (acc, acc, t0))
        a('v_mul_f32 %s, %s, %s' % (mean if ps == 0 else var, f2u(1.0 / 512), acc))
    bf16r(a, var, var)
    a('v_add_f32 %s, %s, %s' % (var, f2u(1e-5), var))
    bf16r(a, var, var)
    a('v_sqrt_f32 %s, %s' % (var, var))
    bf16r(a, var, var)
    bf16r(a, mean, mean)
    a('v_lshrrev_b32 %s, 16, %s' % (mean, mean))
    a('v_or_b32 v%d, %s, %s' % (GR, mean, var))
    a('s_branch k1_have')


def gen_k1(a, opt):
    a.x_nowr = opt.get('x_nowr', 0)
    l = 'v%d' % VL
    code_prefetch(a, 'v1', 'v2', 36, stride_log2=6)
    a('s_cmp_ge_u32 s2, 256')
    a('s_cbranch_scc1 k1_end')
    stamp(a, opt, 0)
    stamp_rt(a, opt, 10)
    a('s_load_dwordx2 s[4:5], s[0:1], 0')
    a('s_load_dwordx2 s[8:9], s[0:1], 8')
    a('s_load_dwordx2 s[52:53], s[0:1], 32')
    a('s_load_dwordx2 s[12:13], s[0:1], 80')
    a('s_load_dwordx2 s[54:55], s[0:1], 72')
    a('s_memrealtime s[56:57]')
    a('v_lshrrev_b32 v3, 6, v0')
    a('v_and_b32 v%d, 63, v0' % VL)
    a('v_readfirstlane_b32 s17, v3')
    a('s_mov_b32 s6, 0x200000')
    a('s_mov_b32 s7, 0x20000')
    a('s_mov_b32 s10, %d' % (512 * 3072))
    a('s_mov_b32 s11, 0x20000')
    a('s_mov_b32 s14, 0x%x' % WS_USED)
    a('s_mov_b32 s15, 0x20000')
    a('s_mov_b32 s34, 0x%x' % ONES_BF)
    a('s_and_b32 s18, s17, 3')
    a('s_and_b32 s25, s2, 7')
    a('s_lshr_b32 s26, s2, 3')
    a('s_lshr_b32 s19, s25, 1')
    a('s_lshl_b32 s19, s19, 2')
    a('s_and_b32 s27, s26, 3')
    a('s_add_u32 s19, s19, s27')
    a('s_and_b32 s20, s25, 1')
    a('s_lshl_b32 s20, s20, 3')
    a('s_lshr_b32 s27, s26, 2')
    a('s_add_u32 s20, s20, s27')
    rot = opt.get('k1rot', 0)
    if rot == 1:
        a('s_lshl_b32 s21, s19, 1')
        a('s_add_u32 s21, s21, s20')
    elif rot == 2:
        a('s_xor_b32 s21, s19, s20')
        a('s_and_b32 s21, s21, 1')
        a('s_lshl_b32 s21, s21, 2')
    else:
        a('s_mov_b32 s21, 0')
    a('s_lshl_b32 s35, s19, 2')
    a('s_add_u32 s35, s35, s18')
    a('s_lshl_b32 s22, s35, 15')
    a('s_lshl_b32 s32, s18, 12')
    a('s_cmp_lt_u32 s17, 4')
    a('s_cbranch_scc1 k1_aux')
    if opt.get('k1cprio'):
        a('s_setprio %d' % opt['k1cprio'])
    a('s_cmp_lt_u32 s17, 8')
    a('s_cbranch_scc1 k1_dma')
    a('v_lshlrev_b32 v4, 4, %s' % l)
    a_read_addr(a, VAB, VAC, l)
    a('s_mov_b32 s27, %d' % LDS_W)
    w_read_addr(a, VWB, VWC, l, 's27')
    a('v_lshlrev_b32 v6, 4, v8')
    a('v_lshlrev_b32 v7, 2, v8')
    a('v_lshl_add_u32 v7, s18, 7, v7')
    a('v_lshlrev_b32 v11, 8, v9')
    a('v_and_b32 v10, 16, %s' % l)
    a('v_lshlrev_b32 v10, 13, v10')
    a('v_lshl_add_u32 v10, v9, 9, v10')
    a('v_and_b32 v12, 15, %s' % l)
    a('v_lshl_add_u32 v10, v12, 4, v10')
    a('v_lshlrev_b32 v9, 4, v9')
    a('v_lshl_add_u32 v9, s18, 7, v9')
    a('s_mov_b32 s36, -1')
    a('s_mov_b32 s37, 0')
    a('s_mul_i32 s44, s20, 3')
    a('s_mov_b32 s24, 0')
    for i in range(48):
        a('v_mov_b32 v%d, 0' % (ACC + i))
    a('s_waitcnt lgkmcnt(0)')
    stamp(a, opt, 2)
    a('s_barrier')
    stamp(a, opt, 3)
    pre = chunk_ops()
    emit_chunk(a, [o for o in pre[pre.index(('B',)):] if o[0] in 'WA'], [], 'NNN', opt)
    a('s_cmp_eq_u32 s20, 10')
    a('s_cbranch_scc1 k1_loop_nns')
    a('s_cmp_gt_u32 s20, 10')
    a('s_cbranch_scc1 k1_loop_sss')
    mainloop(a, 'NNN', 'nnn', opt)
    a('s_cmp_eq_u32 s20, 5')
    a('s_cbranch_scc1 k1_epi_qkk')
    a('s_cmp_gt_u32 s20, 5')
    a('s_cbranch_scc1 k1_epi_kkk')
    epilogue(a, 'QQQ', 'qqq', opt)
    epilogue(a, 'QKK', 'qkk', opt)
    epilogue(a, 'KKK', 'kkk', opt)
    mainloop(a, 'NNS', 'nns', opt)
    epilogue(a, 'KKV', 'kkv', opt)
    mainloop(a, 'SSS', 'sss', opt)
    epilogue(a, 'VVV', 'vvv', opt)
    gen_dma(a, opt)
    gen_aux(a, opt)
    a.label('k1_end')
    a('s_endpgm')
```

```python
from common import *

LKV = 32768
EXCH = 61440
STG = 64
BRED = STG + 57344
BCNT = 0
K2_LDS = 163840
THRESH = 40.0

SA, SB, OA, OB, CM = 16, 32, 48, 64, 80
PA, PB, QA, QB, KF, VF = 96, 104, 112, 116, 120, 124
VADDR, VL, VL16 = 132, 133, 134
MA, MB = 136, 137
T = 138
VSEL, VSA, VHA, VD = 142, 143, 144, 145
X = 148
WB = 212
DD = 228
U = 232
K2_VGPR = 248


def phase(a, S, P, pre, mid1, mid2, opt):
    e = lambda i: 'v_exp_f32 v%d, v%d' % (S + i, S + i)
    c = lambda i: 'v_cvt_pk_bf16_f32 v%d, v%d, v%d' % (P + i, S + 2 * i, S + 2 * i + 1)
    sched = opt.get('sched', 0)
    if sched == 0:
        seq = pre + [e(0), e(1), e(2), e(3)] + mid1 + [e(4), e(5), c(0), e(6), e(7), c(1)] + mid2 + \
            [e(8), e(9), c(2), e(10), e(11), c(3), e(12), e(13), c(4), e(14), e(15), c(5), c(6), c(7)]
    elif sched == 1:
        seq = pre + [e(0), e(1), e(2), e(3)] + mid1 + [e(4), e(5), e(6), e(7)] + mid2 + \
            [e(i) for i in range(8, 16)] + [c(i) for i in range(8)]
    elif sched == 2:
        seq = pre + [e(0), e(1), e(2), e(3), c(0), e(4), e(5), c(1)] + mid1 + [e(6), e(7), c(2), e(8), e(9), c(3), e(10), e(11)] + mid2 + \
            [c(4), e(12), e(13), c(5), e(14), e(15), c(6), c(7)]
    if opt.get('x_nopv'):
        seq = [x for x in seq if not (x.startswith('v_mfma') and (x.split()[1].startswith('v[%d:' % OA) or x.split()[1].startswith('v[%d:' % OB)))]
    if opt.get('x_noqk'):
        seq = [x for x in seq if not (x.startswith('v_mfma') and (x.split()[1].startswith('v[%d:' % SA) or x.split()[1].startswith('v[%d:' % SB)))]
    if opt.get('x_noexp'):
        seq = [x.replace('v_exp_f32', 'v_mov_b32') for x in seq]
    if opt.get('x_rcp'):
        seq = [x.replace('v_exp_f32', 'v_rcp_f32') for x in seq]
    if opt.get('x_nocvt'):
        seq = [x for x in seq if not x.startswith('v_cvt')]
    if opt.get('x_perm'):
        seq = [('v_perm_b32 %s %s %s, s43' % (x.split()[1], x.split()[3] + ',', x.split()[2].rstrip(',')) if x.startswith('v_cvt') else x) for x in seq]
    for x in seq:
        a(x)


def mf(d, x, y, c=None):
    cc = '0' if c == 'zero' else vr(d if c is None else c, 16)
    return 'v_mfma_f32_32x32x16_bf16 %s, %s, %s, %s' % (vr(d, 16), vr(x, 4), vr(y, 4), cc)


def fast_body(a, opt, extra=None):
    for u in range(4):
        o = u * 4096
        pr = ['s_setprio %d' % (3 - u)] if opt.get('prio_tile') else []
        kread = ['ds_read_b128 %s, v%d offset:%d' % (vr(KF, 4), VADDR, o + 4096)]
        vread = ['s_mov_b64 exec, s[40:41]',
                 'ds_read_b128 %s, v%d offset:%d' % (vr(VF, 4), VADDR, o + 1024),
                 'ds_read_b128 %s, v%d offset:%d' % (vr(VF + 4, 4), VADDR, o + 1280),
                 's_mov_b64 exec, -1']
        w2, w0 = ['s_waitcnt lgkmcnt(2)'], ['s_waitcnt lgkmcnt(0)']
        if opt.get('nods'):
            kread, vread, w2, w0 = [], [], [], []
        if opt.get('noexec'):
            vread = vread[1:3]
        ex0 = extra(u, 0) if extra else []
        ex = extra(u, 1) if extra else []
        CM_ = 'zero' if opt.get('czero') else CM
        phase(a, SA, PA, pr + [mf(SB, KF, QB, CM_)] + kread + ex0, [mf(OB, VF, PB)], [mf(OB, VF + 4, PB + 4)] + vread, opt)
        phase(a, SB, PB, w2 + [mf(SA, KF, QA, CM_)] + ex, w0 + [mf(OA, VF, PA)], [mf(OA, VF + 4, PA + 4)], opt)
    a('v_add_u32 v%d, 0x4000, v%d' % (VADDR, VADDR))


def slow_body(a):
    a('s_mov_b32 s45, 0')
    a.label('k2_slow_tile')
    a('ds_read_b128 %s, v%d' % (vr(KF, 4), VADDR))
    a('s_mov_b64 exec, s[40:41]')
    a('ds_read_b128 %s, v%d offset:1024' % (vr(VF, 4), VADDR))
    a('ds_read_b128 %s, v%d offset:1280' % (vr(VF + 4, 4), VADDR))
    a('s_mov_b64 exec, -1')
    a('s_waitcnt lgkmcnt(0)')
    for (S, Q, O, P, M) in ((SA, QA, OA, PA, MA), (SB, QB, OB, PB, MB)):
        a('v_mfma_f32_32x32x16_bf16 %s, %s, %s, 0' % (vr(S, 16), vr(KF, 4), vr(Q, 4)))
        t0, t1 = 'v%d' % T, 'v%d' % (T + 1)
        a('v_max3_f32 %s, v%d, v%d, v%d' % (t0, S, S + 1, M))
        for i in range(1, 8):
            a('v_max3_f32 %s, v%d, v%d, %s' % (t0, S + 2 * i, S + 2 * i + 1, t0))
        a('v_mov_b32 %s, %s' % (t1, t0))
        a('v_permlane32_swap_b32 %s, %s' % (t0, t1))
        a('v_max_f32 %s, %s, %s' % (t0, t0, t1))
        a('v_sub_f32 %s, v%d, %s' % (t1, M, t0))
        a('v_exp_f32 %s, %s' % (t1, t1))
        a('v_mov_b32 v%d, %s' % (M, t0))
        for i in range(16):
            a('v_sub_f32 v%d, v%d, %s' % (S + i, S + i, t0))
        for i in range(16):
            a('v_mul_f32 v%d, v%d, %s' % (O + i, O + i, t1))
        for i in range(16):
            a('v_exp_f32 v%d, v%d' % (S + i, S + i))
        for i in range(8):
            a('v_cvt_pk_bf16_f32 v%d, v%d, v%d' % (P + i, S + 2 * i, S + 2 * i + 1))
        a(mf(O, VF, P))
        a(mf(O, VF + 4, P + 4))
    a('v_add_u32 v%d, 0x1000, v%d' % (VADDR, VADDR))
    a('s_add_u32 s45, s45, 1')
    a('s_cmp_lt_u32 s45, 4')
    a('s_cbranch_scc1 k2_slow_tile')
    a('s_nop 7')
    a('s_nop 3')


def silu(a, dst, src, t):
    a('v_mul_f32 %s, %s, %s' % (t, f2u(NLOG2E), src))
    a('v_exp_f32 %s, %s' % (t, t))
    a('v_add_f32 %s, 1.0, %s' % (t, t))
    a('v_rcp_f32 %s, %s' % (t, t))
    a('v_mul_f32 %s, %s, %s' % (dst, src, t))


def silu4(a, r, t):
    for i in range(4):
        a('v_mul_f32 v%d, %s, v%d' % (t + i, f2u(NLOG2E), r + i))
    for i in range(4):
        a('v_exp_f32 v%d, v%d' % (t + i, t + i))
    for i in range(4):
        a('v_add_f32 v%d, 1.0, v%d' % (t + i, t + i))
    for i in range(4):
        a('v_rcp_f32 v%d, v%d' % (t + i, t + i))
    for i in range(4):
        a('v_mul_f32 v%d, v%d, v%d' % (r + i, r + i, t + i))


def small_gemm(a, nsteps, step_off, half_off):
    def rd(s):
        for j4 in range(2):
            a('ds_read_b64_tr_b16 %s, v6 offset:%d' % (vr(WB + (s & 3) * 4 + j4 * 2, 2), STG + s * step_off + j4 * half_off))
    for s in range(min(4, nsteps)):
        rd(s)
    issued = min(4, nsteps)
    for s in range(nsteps):
        a('s_waitcnt lgkmcnt(%d)' % (2 * (issued - s - 1)))
        c = '0' if s == 0 else vr(DD, 4)
        a('v_mfma_f32_16x16x32_bf16 %s, %s, %s, %s' % (vr(DD, 4), vr(WB + (s & 3) * 4, 4), vr(X + s * 4, 4), c))
        if issued < nsteps:
            rd(issued)
            issued += 1


def sel_issue(a):
    a('s_mov_b32 s46, 0x%x' % SEL)
    a('buffer_load_dword v%d, v%d, s[4:7], s46 offen sc1' % (VSEL, VSA))


def sel_wait(a):
    lab = a.newlabel('k2_psel')
    go = a.newlabel('k2_psel_ok')
    a('s_mov_b32 s46, 0x%x' % SEL)
    a('s_mov_b32 s48, 0')
    a.label(lab)
    a('s_waitcnt vmcnt(0)')
    a('v_cmp_eq_u32 vcc, 0, v%d' % VSEL)
    a('s_cbranch_vccz %s' % go)
    a('s_sleep 4')
    a('buffer_load_dword v%d, v%d, s[4:7], s46 offen sc1' % (VSEL, VSA))
    a('s_add_u32 s48, s48, 1')
    a('s_cmp_lt_u32 s48, 0x10000')
    a('s_cbranch_scc1 %s' % lab)
    a('s_waitcnt vmcnt(0)')
    a.label(go)


def kv_dma(a, lo, hi):
    for i in range(lo, hi):
        a('s_add_u32 m0, s39, %d' % (i * 8192))
        a('s_add_u32 s42, s38, %d' % (i * 8192))
        a('buffer_load_dwordx4 v%d, s[4:7], s42 offen lds' % VL16)


def st1(a, opt, i):
    if opt.get('stamp') == 1:
        stamp(a, opt, i)


def st3(a, opt, i):
    if opt.get('stamp') == 3:
        stamp(a, opt, i)


def st2(a, opt, i):
    if opt.get('stamp') == 2:
        stamp(a, opt, i)


_dn = [0]


def dma_next():
    _dn[0] += 1
    lab = 'k2_dn_%d' % _dn[0]
    return ['s_cmp_eq_u32 s95, 0', 's_cbranch_scc1 %s' % lab, 's_mov_b32 m0, s39', 's_sub_u32 s95, s95, 1',
            'buffer_load_dwordx4 v%d, s[96:99], s38 offen lds' % VD, 's_add_u32 s39, s39, s100', 's_add_u32 s38, s38, s101',
            lab + ':']


def gen_k2(a, opt):
    l = 'v%d' % VL
    opt = dict(opt)
    opt.setdefault('prio_tile', 1)
    a('s_cmp_ge_u32 s2, 256')
    a('s_cbranch_scc1 k2_end')
    stamp(a, opt, 0)
    stamp_rt(a, opt, 10)
    a('s_load_dwordx2 s[4:5], s[0:1], 80')
    a('s_load_dwordx4 s[8:11], s[0:1], 40')
    a('s_load_dwordx2 s[16:17], s[0:1], 56')
    a('s_load_dwordx2 s[20:21], s[0:1], 16')
    a('s_load_dwordx2 s[22:23], s[0:1], 0')
    a('v_lshrrev_b32 v1, 6, v0')
    a('v_and_b32 %s, 63, v0' % l)
    a('v_readfirstlane_b32 s24, v1')
    a('v_lshlrev_b32 v%d, 4, %s' % (VL16, l))
    a('s_mov_b32 s6, 0x%x' % WS_USED)
    a('s_mov_b32 s7, 0x20000')
    a('s_and_b32 s25, s2, 7')
    a('s_lshr_b32 s26, s2, 3')
    a('s_and_b32 s27, s26, 3')
    a('s_lshl_b32 s28, s25, 2')
    a('s_add_u32 s27, s27, s28')
    a('s_lshr_b32 s28, s26, 2')
    a('s_and_b32 s29, s24, 3')
    a('s_lshr_b32 s30, s24, 2')
    a('s_lshl_b32 s31, s28, 3')
    a('s_lshl_b32 s32, s29, 1')
    a('s_add_u32 s31, s31, s32')
    a('s_add_u32 s31, s31, s30')
    a('s_xor_b32 s32, s31, 1')
    a('s_lshl_b32 s33, s27, 16')
    a('s_lshl_b32 s34, s31, 10')
    a('s_add_u32 s34, s34, s33')
    a('s_lshl_b32 s35, s32, 10')
    a('s_add_u32 s35, s35, s33')
    a('s_lshl_b32 s36, s27, 8')
    a('s_add_u32 s36, s36, 0x%x' % KNORM)
    a('v_lshlrev_b32 v2, 2, %s' % l)
    a('s_lshl_b32 s37, s27, 17')
    a('s_lshl_b32 s39, s24, 10')
    a('s_add_u32 s38, s37, s39')
    a('s_add_u32 s38, s38, 0x%x' % KV)
    a('s_add_u32 s39, s39, %d' % LKV)
    a('s_waitcnt lgkmcnt(0)')
    a('buffer_load_dwordx4 %s, v%d, s[4:7], s34 offen' % (vr(QA, 4), VL16))
    a('buffer_load_dwordx4 %s, v%d, s[4:7], s35 offen' % (vr(QB, 4), VL16))
    a('buffer_load_dword v3, v2, s[4:7], s36 offen')
    kv_dma(a, 0, 3)
    a('s_cmp_eq_u32 s24, 2')
    a('s_cbranch_scc0 k2_nokeys')
    a('s_lshl_b32 s45, s2, 5')
    a('s_add_u32 s45, s45, 0x%x' % KEY)
    a('s_add_u32 s52, s4, s45')
    a('s_addc_u32 s53, s5, 0')
    a('s_load_dwordx8 s[56:63], s[52:53], 0')
    a.label('k2_nokeys')
    a('s_mov_b32 s12, s10')
    a('s_mov_b32 s13, s11')
    a('s_mov_b32 s10, %d' % (512 * 3584))
    a('s_mov_b32 s11, 0x20000')
    a('s_mov_b32 s14, %d' % (512 * 3584))
    a('s_mov_b32 s15, 0x20000')
    a('s_mov_b32 s18, %d' % (1792 * 1024))
    a('s_mov_b32 s19, 0x20000')
    a('s_mov_b32 s40, 0xffff')
    a('s_mov_b32 s41, 0xffff')
    a('s_lshl_b32 s42, s30, 11')
    a('s_add_u32 s42, s42, %d' % LKV)
    a('v_add_u32 v%d, s42, v%d' % (VADDR, VL16))
    for i in range(0, 16, 2):
        a('v_mov_b64 %s, 0' % vr(OA + i, 2))
        a('v_mov_b64 %s, 0' % vr(OB + i, 2))
    a('ds_write_b32 v%d, v%d offset:%d' % (OA, OA, BCNT))
    a('v_and_b32 v4, 27, %s' % l)
    a('v_cmp_eq_u32 vcc, 16, v4')
    a('v_mov_b32 v4, 0x%x' % ONES_BF)
    a('v_and_b32 v%d, 7, %s' % (VSA, l))
    a('v_cndmask_b32 v%d, 0, v4, vcc' % VF)
    a('v_cndmask_b32 v%d, 0, v4, vcc' % (VF + 1))
    for i in range(0, 8, 2):
        a('v_mov_b64 %s, 0' % vr(PB + i, 2))
        if i:
            a('v_mov_b64 %s, %s' % (vr(VF + i, 2), vr(VF, 2)))
    a('v_lshlrev_b32 v%d, 2, v%d' % (VSA, VSA))
    a('v_mov_b32 v%d, 0' % VHA)
    a('v_mov_b32 v%d, %s' % (MA, f2u(-3.0e38)))
    a('v_mov_b32 v%d, %s' % (MB, f2u(-3.0e38)))
    na, nb, t0 = 'v4', 'v5', 'v6'
    a('v_mov_b32 %s, 0' % na)
    a('v_mov_b32 %s, 0' % nb)
    st1(a, opt, 1)
    a('s_waitcnt vmcnt(3)')
    st1(a, opt, 2)
    for i in range(4):
        a('v_dot2c_f32_bf16 %s, v%d, v%d' % (na, QA + i, QA + i))
        a('v_dot2c_f32_bf16 %s, v%d, v%d' % (nb, QB + i, QB + i))
    wave_reduce(a, ['v3'], 'v_max_f32')
    a('v_permlane32_swap_b32 %s, %s' % (na, nb))
    a('v_add_f32 %s, %s, %s' % (na, na, nb))
    a('v_readlane_b32 s42, v3, 63')
    a('v_mov_b32 %s, %s' % (nb, na))
    a('v_permlane32_swap_b32 %s, %s' % (na, nb))
    a('v_max_f32 %s, %s, %s' % (na, na, nb))
    a('v_mul_f32 %s, s42, %s' % (na, na))
    a('v_sqrt_f32 %s, %s' % (na, na))
    a('v_mul_f32 v%d, %s, %s' % (CM, f2u(-1.02), na))
    a('v_mul_f32 v%d, %s, %s' % (CM + 1, f2u(-1.02), na))
    a('v_cmp_nle_f32 vcc, %s, v%d' % (f2u(-THRESH), CM))
    for i in range(2, 16, 2):
        a('v_mov_b64 %s, %s' % (vr(CM + i, 2), vr(CM, 2)))
    a('s_cmp_lg_u64 vcc, 0')
    a('s_cselect_b32 s43, 1, 0')
    if opt.get('force_slow'):
        a('s_mov_b32 s43, 1')
    a('s_waitcnt vmcnt(0) lgkmcnt(0)')
    a('s_barrier')
    st1(a, opt, 3)
    a('ds_read_b128 %s, v%d' % (vr(KF, 4), VADDR))
    a('s_cmp_eq_u32 s24, 2')
    a('s_cbranch_scc0 k2_nokeys2')
    for i in range(8):
        a('s_mov_b32 s45, 0x%x' % (KEY + i * 1024))
        a('buffer_load_dwordx4 %s, v%d, s[4:7], s45 offen' % (vr(X + 4 * i, 4), VL16))
    a.label('k2_nokeys2')
    a('s_add_u32 s38, s38, %d' % (3 * 8192))
    a('s_add_u32 s39, s39, %d' % (3 * 8192))
    a('s_mov_b64 s[96:97], s[4:5]')
    a('s_mov_b32 s98, s6')
    a('s_mov_b32 s99, 0x20000')
    a('s_movk_i32 s100, 8192')
    a('s_movk_i32 s101, 8192')
    a('s_mov_b32 s95, 13')
    a('v_mov_b32 v%d, v%d' % (VD, VL16))
    a('s_mov_b32 s44, 0')
    a('s_waitcnt lgkmcnt(0)')
    a(mf(SA, KF, QA, CM))
    a('s_nop 7')
    a('s_branch k2_body')
    a.label('k2_loop')
    a('s_setprio 3')
    for h in (1, 2, 3):
        a('s_cmp_eq_u32 s44, %d' % h)
        a('s_cbranch_scc1 k2_hook%d' % h)
    a('s_cmp_ge_u32 s24, 4')
    a('s_cbranch_scc1 k2_body')
    for h in (4, 6, 7):
        a('s_cmp_eq_u32 s44, %d' % h)
        a('s_cbranch_scc1 k2_hook%d' % h)
    a.label('k2_body')
    a('s_cmp_lg_u32 s43, 0')
    a('s_cbranch_scc1 k2_slow')
    a('s_cmp_lg_u32 s95, 0')
    a('s_cbranch_scc1 k2_body_dma')
    a('.p2align 3')
    fast_body(a, opt)
    a.label('k2_next')
    a('s_add_u32 s44, s44, 1')
    a('s_cmp_lt_u32 s44, 8')
    a('s_cbranch_scc1 k2_loop')
    stamp(a, opt, 7)
    a('s_cmp_lg_u32 s43, 0')
    a('s_cbranch_scc1 k2_nopv')
    a(mf(OB, VF, PB))
    a(mf(OB, VF + 4, PB + 4))
    a.label('k2_nopv')
    stamp(a, opt, 8)
    a('s_mul_i32 s45, s24, 2560')
    a('s_add_u32 s45, s45, %d' % EXCH)
    a('s_xor_b32 s46, s24, 4')
    a('s_mul_i32 s46, s46, 2560')
    a('s_add_u32 s46, s46, %d' % EXCH)
    a('v_add_u32 v4, s45, v%d' % VL16)
    a('v_add_u32 v5, s46, v%d' % VL16)
    a('v_lshl_add_u32 v6, %s, 3, s45' % l)
    a('v_lshl_add_u32 v7, %s, 3, s46' % l)
    a('s_lshl_b32 s47, s31, 15')
    a('s_lshl_b32 s48, s27, 10')
    a('s_add_u32 s47, s47, s48')
    a('s_add_u32 s47, s47, 0x%x' % OF)
    a('s_nop 0')
    a('v_mov_b32 v%d, v%d' % (OB + 9, MB))
    a('ds_write_b128 v4, %s' % vr(OB, 4))
    a('ds_write_b128 v4, %s offset:1024' % vr(OB + 4, 4))
    a('ds_write_b64 v6, %s offset:2048' % vr(OB + 8, 2))
    a('s_waitcnt lgkmcnt(0)')
    a('s_barrier')
    a('ds_read_b128 %s, v5' % vr(SA, 4))
    a('ds_read_b128 %s, v5 offset:1024' % vr(SA + 4, 4))
    a('ds_read_b64 %s, v7 offset:2048' % vr(SA + 8, 2))
    a('s_waitcnt lgkmcnt(0)')
    a('s_cmp_lg_u32 s43, 0')
    a('s_cbranch_scc1 k2_merge_slow')
    a.label('k2_merged')
    a('v_add_f32 v%d, v%d, v%d' % (OA + 8, OA + 8, SA + 8))
    a('v_rcp_f32 v%d, v%d' % (OA + 8, OA + 8))
    for i in range(8):
        a('v_add_f32 v%d, v%d, v%d' % (OA + i, OA + i, SA + i))
    for i in range(8):
        a('v_mul_f32 v%d, v%d, v%d' % (OA + i, OA + i, OA + 8))
    for i in range(4):
        a('v_cvt_pk_bf16_f32 v%d, v%d, v%d' % (PA + i, OA + 2 * i, OA + 2 * i + 1))
    a('buffer_store_dwordx4 %s, v%d, s[4:7], s47 offen %s' % (vr(PA, 4), VL16, opt.get('k2st', '')))
    if opt.get('stamp'):
        a('s_waitcnt vmcnt(0)')
    stamp(a, opt, 9)
    stamp_rt(a, opt, 11)
    dbg_flush(a, opt, 1, 's24', [10, 11, 1, 3, 8], 6)
    stamp_flush(a, opt, 1, 's[4:7]', 's24', 8)
    a.label('k2_end')
    a('s_endpgm')
    a.label('k2_merge_slow')
    a('v_max_f32 v6, v%d, v%d' % (MA, SA + 9))
    a('v_sub_f32 v7, v%d, v6' % MA)
    a('v_sub_f32 v8, v%d, v6' % (SA + 9))
    a('v_exp_f32 v7, v7')
    a('v_exp_f32 v8, v8')
    for i in range(9):
        a('v_mul_f32 v%d, v%d, v7' % (OA + i, OA + i))
        a('v_mul_f32 v%d, v%d, v8' % (SA + i, SA + i))
    a('s_branch k2_merged')
    a.label('k2_slow')
    for k in range(7):
        for x in dma_next():
            a(x)
    slow_body(a)
    a('s_branch k2_next')
    a('.p2align 3')
    a.label('k2_body_dma')
    fast_body(a, opt, lambda u, ph: dma_next() if (u, ph) != (3, 1) else [])
    a('s_branch k2_next')
    a.label('k2_hook1')
    st1(a, opt, 4)
    a('s_waitcnt vmcnt(0)')
    a('s_barrier')
    a('s_cmp_eq_u32 s24, 2')
    a('s_cbranch_scc0 k2_body')
    a('v_max3_u32 v4, v%d, v%d, v%d' % (X, X + 1, X + 2))
    a('v_max3_u32 v5, v%d, v%d, v%d' % (X + 3, X + 4, X + 5))
    for i in range(6, 30, 4):
        a('v_max3_u32 v4, v%d, v%d, v4' % (X + i, X + i + 1))
        a('v_max3_u32 v5, v%d, v%d, v5' % (X + i + 2, X + i + 3))
    a('v_max3_u32 v4, v%d, v%d, v4' % (X + 30, X + 31))
    a('v_max_u32 v4, v4, v5')
    a('s_max_u32 s45, s56, s57')
    for i in range(58, 64):
        a('s_max_u32 s45, s45, s%d' % i)
    a('v_cmp_lt_u32 vcc, s45, v4')
    a('s_bcnt1_i32_b64 s46, vcc')
    a('s_cmp_ge_u32 s46, 8')
    a('s_cbranch_scc1 k2_body')
    a('s_mov_b32 s47, 0')
    a.label('k2_rank_loop')
    a('v_cmp_lt_u32 vcc, s56, v4')
    a('s_bcnt1_i32_b64 s46, vcc')
    a('s_cmp_ge_u32 s46, 8')
    a('s_cbranch_scc1 k2_rank_next')
    a('s_mov_b32 s46, 0')
    for i in range(32):
        a('v_cmp_lt_u32 vcc, s56, v%d' % (X + i))
        a('s_bcnt1_i32_b64 s45, vcc')
        a('s_add_u32 s46, s46, s45')
    a('s_cmp_ge_u32 s46, 8')
    a('s_cbranch_scc1 k2_rank_next')
    a('s_lshl_b32 s46, s46, 2')
    a('s_add_u32 s46, s46, 0x%x' % SEL)
    a('v_mov_b32 v5, s56')
    a('v_mov_b32 v6, 0')
    a('s_mov_b64 exec, 1')
    a('buffer_store_dword v5, v6, s[4:7], s46 offen sc1')
    a('s_mov_b64 exec, -1')
    a.label('k2_rank_next')
    for i in range(56, 63):
        a('s_mov_b32 s%d, s%d' % (i, i + 1))
    a('s_add_u32 s47, s47, 1')
    a('s_cmp_lt_u32 s47, 8')
    a('s_cbranch_scc1 k2_rank_loop')
    a('s_branch k2_body')
    a.label('k2_hook2')
    a('s_cmp_ge_u32 s24, 4')
    a('s_cbranch_scc1 k2_body')
    a('s_cmp_lt_u32 s26, 28')
    a('s_cbranch_scc0 k2_body')
    sel_issue(a)
    a('s_mul_i32 s45, s25, 28')
    a('s_add_u32 s45, s45, s26')
    a('s_lshl_b32 s45, s45, 4')
    a('s_mul_i32 s46, s24, %d' % (128 * 3584))
    a('s_add_u32 s38, s45, s46')
    a('s_movk_i32 s46, 3584')
    a('v_mul_u32_u24 v%d, s46, %s' % (VD, l))
    a('s_lshl_b32 s39, s24, 11')
    a('s_add_u32 s39, s39, %d' % STG)
    a('s_mov_b64 s[96:97], s[8:9]')
    a('s_mov_b32 s98, s10')
    a('s_movk_i32 s100, 1024')
    a('s_mov_b32 s101, %d' % (64 * 3584))
    a('s_mov_b32 s95, 2')
    a('s_branch k2_body')
    a.label('k2_hook3')
    st3(a, opt, 1)
    st1(a, opt, 6)
    a('s_waitcnt vmcnt(0)')
    a('s_barrier')
    a('s_cmp_lt_u32 s24, 4')
    a('s_cbranch_scc1 k2_h3_old')
    a('v_lshlrev_b32 v4, 7, %s' % l)
    a('s_cmp_lt_u32 s24, 6')
    a('s_cbranch_scc0 k2_h3_pfx')
    a('s_lshl_b32 s45, s26, 1')
    a('s_add_u32 s45, s45, s29')
    a('s_lshl_b32 s45, s45, 13')
    a('v_add_u32 v4, s45, v4')
    a('global_load_dword v15, v4, s[20:21]')
    a('s_branch k2_body')
    a.label('k2_h3_pfx')
    a('s_lshl_b32 s45, s25, 5')
    a('s_add_u32 s45, s45, s26')
    a('s_lshl_b32 s45, s45, 13')
    a('s_cmp_eq_u32 s24, 6')
    a('s_cbranch_scc0 k2_h3_pfxn')
    a('v_add_u32 v4, s45, v4')
    a('global_load_dword v15, v4, s[22:23]')
    a('s_branch k2_body')
    a.label('k2_h3_pfxn')
    a('s_add_u32 s45, s45, 0x%x' % XN)
    a('buffer_load_dword v15, v4, s[4:7], s45 offen')
    a('s_branch k2_body')
    a.label('k2_h3_old')
    st3(a, opt, 2)
    a('s_cmp_lt_u32 s26, 28')
    a('s_cbranch_scc0 k2_h3_B')
    sel_wait(a)
    st3(a, opt, 3)
    if opt.get('stamp') == 3:
        a('s_add_u32 s76, s64, s48')
    a('v_and_b32 v4, 0x7ff, v%d' % VSEL)
    a('v_sub_u32 v4, 0x7ff, v4')
    a('v_and_b32 v6, 48, %s' % l)
    a('v_lshl_add_u32 v4, v4, 10, v6')
    a('s_lshl_b32 s46, s24, 8')
    a('s_add_u32 s46, s46, 0x%x' % XN)
    for s in range(4):
        a('buffer_load_dwordx4 %s, v4, s[4:7], s46 offen offset:%d' % (vr(X + 4 * s, 4), s * 64))
    st3(a, opt, 4)
    a('s_sub_u32 s38, s38, %d' % (128 * 3584))
    a('s_add_u32 s39, s39, %d' % (8256 - 2048))
    a('s_mov_b64 s[96:97], s[12:13]')
    a('s_mov_b32 s95, 2')
    a('s_branch k2_body')
    a.label('k2_h3_B')
    a('s_lshl_b32 s45, s25, 2')
    a('s_add_u32 s45, s45, s26')
    a('s_sub_u32 s45, s45, 28')
    a('s_lshl_b32 s45, s45, 5')
    a('s_mul_i32 s46, s24, %d' % (448 * 1024))
    a('s_add_u32 s38, s45, s46')
    a('s_mul_i32 s39, s24, 14336')
    a('s_add_u32 s39, s39, %d' % STG)
    a('v_lshrrev_b32 v4, 1, %s' % l)
    a('v_and_b32 v5, 1, %s' % l)
    a('v_lshlrev_b32 v5, 4, v5')
    a('v_lshl_add_u32 v%d, v4, 10, v5' % VD)
    a('s_mov_b64 s[96:97], s[16:17]')
    a('s_mov_b32 s98, s18')
    a('s_movk_i32 s100, 1024')
    a('s_mov_b32 s101, 32768')
    a('s_mov_b32 s95, 14')
    a('s_branch k2_body')

    def arrive(notlast):
        a('v_lshl_add_u32 v6, s24, 10, v%d' % VL16)
        a('v_mov_b32 v7, 0')
        a('v_mov_b32 v8, 1')
        a('s_mov_b32 exec_lo, 0x00ff00ff')
        a('s_mov_b32 exec_hi, 0x00ff00ff')
        a('ds_write_b128 v6, %s offset:%d' % (vr(DD, 4), BRED))
        a('s_mov_b64 exec, 1')
        a('ds_add_rtn_u32 v8, v7, v8 offset:%d' % BCNT)
        a('s_mov_b64 exec, -1')
        a('s_waitcnt lgkmcnt(0)')
        a('v_readfirstlane_b32 s46, v8')
        a('s_cmp_eq_u32 s46, 3')
        a('s_cbranch_scc0 %s' % notlast)
        for w in range(4):
            a('ds_read_b128 %s, v%d offset:%d' % (vr(X + 4 * w, 4), VL16, BRED + w * 1024))

    def sum4():
        a('s_waitcnt lgkmcnt(0)')
        for i in range(4):
            a('v_add_f32 v%d, v%d, v%d' % (X + i, X + i, X + 4 + i))
            a('v_add_f32 v%d, v%d, v%d' % (X + 8 + i, X + 8 + i, X + 12 + i))
        for i in range(4):
            a('v_add_f32 v%d, v%d, v%d' % (X + i, X + i, X + 8 + i))

    def round4(r):
        for (r0, r1) in ((r, r + 1), (r + 2, r + 3)):
            a('v_cvt_pk_bf16_f32 v%d, v%d, v%d' % (r1, r0, r1))
        for (r0, r1) in ((r, r + 1), (r + 2, r + 3)):
            a('v_lshlrev_b32 v%d, 16, v%d' % (r0, r1))
            a('v_and_b32 v%d, 0xffff0000, v%d' % (r1, r1))
    a.label('k2_hook4')
    st3(a, opt, 5)
    st2(a, opt, 1)
    a('s_cmp_lt_u32 s26, 28')
    a('s_cbranch_scc1 k2_h4_A')
    sel_issue(a)
    a('s_branch k2_body')
    a.label('k2_h4_A')
    a('v_lshrrev_b32 v5, 4, %s' % l)
    a('v_bfe_u32 v6, %s, 2, 2' % l)
    a('v_lshl_add_u32 v6, v5, 3, v6')
    a('v_lshlrev_b32 v6, 4, v6')
    a('v_and_b32 v7, 1, %s' % l)
    a('v_lshl_add_u32 v6, v7, 3, v6')
    a('v_bfe_u32 v7, %s, 1, 1' % l)
    a('s_movk_i32 s47, 8256')
    a('v_mad_u32_u24 v6, v7, s47, v6')
    a('v_lshl_add_u32 v6, s24, 11, v6')
    a('s_waitcnt vmcnt(0)')
    small_gemm(a, 4, 512, 64)
    arrive('k2_body')
    a('v_and_b32 v4, 7, %s' % l)
    a('s_movk_i32 s47, 3584')
    a('v_lshlrev_b32 v5, 3, v5')
    a('v_mad_u32_u24 v4, v4, s47, v5')
    a('s_mul_i32 s45, s25, 28')
    a('s_add_u32 s45, s45, s26')
    a('s_lshl_b32 s45, s45, 4')
    a('s_add_u32 s45, s45, 0x%x' % HB)
    sum4()
    round4(X)
    for i in range(4):
        a('v_mov_b32 v%d, v%d' % (U + i, X + i))
    for i in range(4):
        a('v_permlane32_swap_b32 v%d, v%d' % (X + i, U + i))
    silu4(a, X, U + 4)
    round4(X)
    for i in range(4):
        a('v_mul_f32 v%d, v%d, v%d' % (X + i, X + i, U + i))
    a('v_cvt_pk_bf16_f32 v%d, v%d, v%d' % (U, X, X + 1))
    a('v_cvt_pk_bf16_f32 v%d, v%d, v%d' % (U + 1, X + 2, X + 3))
    a('v_min_u32 v%d, -2, v%d' % (U, U))
    a('v_min_u32 v%d, -2, v%d' % (U + 1, U + 1))
    a('s_mov_b64 exec, 0x00ff00ff')
    a('buffer_store_dwordx2 %s, v4, s[4:7], s45 offen sc1' % vr(U, 2))
    a('s_mov_b64 exec, -1')
    st2(a, opt, 6)
    a('s_branch k2_body')
    def h_loads():
        for s in range(14):
            a('buffer_load_dwordx4 %s, v%d, s[4:7], s50 offen offset:%d sc1' % (vr(X + 4 * s, 4), VHA, s * 64))
    a.label('k2_hook6')
    st2(a, opt, 3)
    a('s_cmp_lt_u32 s26, 28')
    a('s_cbranch_scc1 k2_body')
    sel_wait(a)
    a('s_lshl_b32 s49, s25, 2')
    a('s_add_u32 s49, s49, s26')
    a('s_sub_u32 s49, s49, 28')
    a('v_and_b32 v6, 0x7ff, v%d' % VSEL)
    a('v_sub_u32 v6, 0x7ff, v6')
    a('v_and_b32 v5, 48, %s' % l)
    a('v_lshrrev_b32 v7, 1, v5')
    a('v_lshl_add_u32 v6, v6, 10, v7')
    a('s_lshl_b32 s46, s49, 5')
    a('s_add_u32 s46, s46, 0x%x' % XN)
    a('buffer_load_dwordx2 %s, v6, s[4:7], s46 offen' % vr(U, 2))
    a('s_movk_i32 s47, 896')
    a('v_mad_u32_u24 v%d, v%d, s47, v5' % (VHA, VSA))
    a('s_mul_i32 s50, s24, 896')
    a('s_add_u32 s50, s50, 0x%x' % HB)
    h_loads()
    a('s_branch k2_body')
    a.label('k2_hook7')
    st2(a, opt, 4)
    a('s_cmp_lt_u32 s26, 28')
    a('s_cbranch_scc1 k2_body')
    a('s_mov_b32 s48, 0')
    a.label('k2_b_poll')
    a('s_waitcnt vmcnt(0)')
    a('v_max_u32 v6, v%d, v%d' % (X, X + 2))
    for s in range(1, 14):
        a('v_max3_u32 v6, v%d, v%d, v6' % (X + 4 * s, X + 4 * s + 2))
    a('v_cmp_eq_u32 vcc, -1, v6')
    a('s_cbranch_vccz k2_b_go')
    h_loads()
    a('s_add_u32 s48, s48, 1')
    a('s_cmp_lt_u32 s48, 0x10000')
    a('s_cbranch_scc1 k2_b_poll')
    a('s_waitcnt vmcnt(0)')
    a.label('k2_b_go')
    st2(a, opt, 5)
    a('v_lshrrev_b32 v5, 4, %s' % l)
    a('v_bfe_u32 v6, %s, 2, 2' % l)
    a('v_lshl_add_u32 v6, v5, 3, v6')
    a('v_lshlrev_b32 v6, 5, v6')
    a('v_and_b32 v7, 3, %s' % l)
    a('v_lshl_add_u32 v6, v7, 3, v6')
    a('s_mul_i32 s46, s24, 14336')
    a('v_add_u32 v6, s46, v6')
    small_gemm(a, 14, 1024, 128)
    arrive('k2_body')
    a('v_xor_b32 v4, 0x80000000, v%d' % VSEL)
    a('v_ashrrev_i32 v6, 31, v4')
    a('v_and_b32 v6, 0x7fff0000, v6')
    a('v_xor_b32 v4, v4, v6')
    a('v_and_b32 v4, 0xffff0000, v4')
    a('v_mul_f32 v4, %s, v4' % f2u(NLOG2E))
    a('v_exp_f32 v4, v4')
    a('v_lshlrev_b32 v%d, 16, v%d' % (U + 4, U))
    a('v_add_f32 v4, 1.0, v4')
    a('v_and_b32 v%d, 0xffff0000, v%d' % (U + 5, U))
    a('v_rcp_f32 v4, v4')
    a('v_lshlrev_b32 v%d, 16, v%d' % (U + 6, U + 1))
    a('v_and_b32 v%d, 0xffff0000, v%d' % (U + 7, U + 1))
    bf16r(a, 'v4', 'v4')
    sum4()
    round4(X)
    for i in range(4):
        a('v_mul_f32 v%d, v%d, v4' % (X + i, X + i))
    round4(X)
    for i in range(4):
        a('v_add_f32 v%d, v%d, v%d' % (X + i, X + i, U + 4 + i))
    round4(X)
    silu4(a, X, U + 8)
    a('v_lshlrev_b32 v7, 4, v5')
    a('v_lshl_add_u32 v6, v%d, 9, v7' % VSA)
    a('s_lshl_b32 s46, s49, 6')
    a('s_add_u32 s46, s46, 0x%x' % GSEL)
    a('s_mov_b32 exec_lo, 0x00ff00ff')
    a('s_mov_b32 exec_hi, 0x00ff00ff')
    a('buffer_store_dwordx4 %s, v6, s[4:7], s46 offen' % vr(X, 4))
    a('s_mov_b64 exec, -1')
    st2(a, opt, 6)
    a('s_branch k2_body')
```

```python
from asmlib import *

NAME = 'recurrent_scan__mha_block__moe_arch_mod__prompt'
QF = 0x000000
KV = 0x200000
OF = 0x600000
XN = 0x800000
KEY = 0xA00000
KNORM = 0xA04000
SEL = 0xA06000
HB = 0xA08000
GSEL = 0xA10000
STAT = 0xA14000
FLG = 0xA40000
WS_USED = 0xC00000
ONES_BF = 0x3f803f80
QSCALE = 0.25 * 1.4426950408889634
NLOG2E = -1.4426950408889634


def f2u(x):
    import struct
    return '0x%08x' % struct.unpack('<I', struct.pack('<f', x))[0]


def code_prefetch(a, vtmp, vdst, stmp, tid='v0', end='code_end', stride_log2=7):
    lab = a.newlabel('pf')
    a('s_getpc_b64 %s' % sr(stmp, 2))
    a.label(lab)
    a('v_lshlrev_b32 %s, %d, %s' % (vtmp, stride_log2, tid))
    a('v_min_u32 %s, %s-%s-4, %s' % (vtmp, end, lab, vtmp))
    a('global_load_dword %s, %s, %s' % (vdst, vtmp, sr(stmp, 2)))


def wave_reduce(a, regs, op='v_add_f32'):
    steps = ['quad_perm:[1,0,3,2] row_mask:0xf bank_mask:0xf',
             'quad_perm:[2,3,0,1] row_mask:0xf bank_mask:0xf',
             'row_half_mirror row_mask:0xf bank_mask:0xf',
             'row_mirror row_mask:0xf bank_mask:0xf',
             'row_bcast:15 row_mask:0xa bank_mask:0xf',
             'row_bcast:31 row_mask:0xc bank_mask:0xf']
    for s in steps:
        for r in regs:
            a('%s_dpp %s, %s, %s %s' % (op, r, r, r, s))


def bf16r(a, dst, src, tmp=None):
    a('v_cvt_pk_bf16_f32 %s, %s, %s' % (dst, src, src))
    a('v_and_b32 %s, 0xffff0000, %s' % (dst, dst))


def kernel_header(name):
    return ('.globl %s\n.p2align 8\n.type %s,@function\n%s:\n' % (name, name, name))


def kernel_desc(name, vgpr, sgpr=102):
    acc = (vgpr + 3) // 4 * 4
    return ('.amdhsa_kernel %s\n  .amdhsa_next_free_vgpr %d\n  .amdhsa_next_free_sgpr %d\n  .amdhsa_accum_offset %d\n'
            '  .amdhsa_group_segment_fixed_size 0\n  .amdhsa_kernarg_size 88\n  .amdhsa_user_sgpr_count 2\n'
            '  .amdhsa_user_sgpr_kernarg_segment_ptr 1\n  .amdhsa_system_sgpr_workgroup_id_x 1\n'
            '  .amdhsa_float_denorm_mode_32 3\n.end_amdhsa_kernel\n' % (name, vgpr, sgpr, acc))


STAMP = 0xB00000
NST = 12
def stamp(a, opt, idx):
    if not opt.get('stamp'):
        return
    a('s_memtime %s' % sr(64 + 2 * idx, 2))
    a('s_waitcnt lgkmcnt(0)')


def stamp_rt(a, opt, idx):
    if not opt.get('stamp'):
        return
    a('s_memrealtime %s' % sr(64 + 2 * idx, 2))
    a('s_waitcnt lgkmcnt(0)')


def stamp_flush(a, opt, kern, srd, swave, nw):
    if not opt.get('stamp'):
        return
    a('s_mul_i32 s90, s2, %d' % nw)
    a('s_add_u32 s90, s90, %s' % swave)
    a('s_lshl_b32 s90, s90, 6')
    a('s_add_u32 s90, s90, 0x%x' % (STAMP + kern * 0x40000))
    a('s_mov_b64 exec, 1')
    a('v_mov_b32 v1, 0')
    for i in range(NST):
        a('v_mov_b32 v2, s%d' % (64 + 2 * i))
        a('buffer_store_dword v2, v1, %s, s90 offen offset:%d' % (srd, 4 * i))
        a('s_nop 1')


def dbg_flush(a, opt, kern, swave, idxs, slot0):
    if not opt.get('dbgstamp'):
        return
    lab = a.newlabel('dbgskip')
    a('s_cmp_lg_u32 s2, %d' % opt.get('dbgwg', 0))
    a('s_cbranch_scc1 %s' % lab)
    a('s_cmp_lg_u32 %s, 0' % swave)
    a('s_cbranch_scc1 %s' % lab)
    a('s_load_dwordx2 s[92:93], s[0:1], 72')
    a('s_waitcnt lgkmcnt(0)')
    a('s_add_u32 s92, s92, %d' % (512 * (2 - kern)))
    a('s_addc_u32 s93, s93, 0')
    a('s_mov_b64 exec, 1')
    a('v_mov_b32 v1, 0')
    for k, i in enumerate(idxs):
        if i >= 10:
            a('v_mov_b32 v2, s%d' % (64 + 2 * i))
        else:
            a('s_sub_u32 s94, s%d, s64' % (64 + 2 * i))
            a('v_mov_b32 v2, s94')
        a('global_store_dword v1, v2, s[92:93] offset:%d' % (4 * (slot0 + k)))
        a('s_nop 1')
    a.label(lab)


def readout(a, opt, srd, swave):
    ro = opt.get('readout')
    if not ro:
        return
    (ka, wga, wa, ia), (kb, wgb, wb, ib) = ro
    nws = (12, 8, 8)
    lab = a.newlabel('ro_skip')
    a('s_cmp_lg_u32 s2, %d' % opt.get('rowg', 128))
    a('s_cbranch_scc1 %s' % lab)
    a('s_cmp_lg_u32 %s, 0' % swave)
    a('s_cbranch_scc1 %s' % lab)
    a('s_waitcnt vmcnt(0)')
    a('v_mov_b32 v1, 0')
    a('s_mov_b32 s90, 0x%x' % (STAMP + ka * 0x40000 + (wga * nws[ka] + wa) * 64 + 4 * ia))
    a('s_mov_b32 s91, 0x%x' % (STAMP + kb * 0x40000 + (wgb * nws[kb] + wb) * 64 + 4 * ib))
    a('buffer_load_dword v2, v1, %s, s90 offen sc1' % srd)
    a('buffer_load_dword v3, v1, %s, s91 offen sc1' % srd)
    a('s_memrealtime s[92:93]')
    a('s_waitcnt vmcnt(0) lgkmcnt(0)')
    a('v_sub_u32 v2, v3, v2')
    a('v_readfirstlane_b32 s90, v2')
    if ia < 10:
        a('s_lshr_b32 s90, s90, 4')
        a('s_lshl_b32 s90, s90, 2')
    else:
        a('s_lshl_b32 s90, s90, 2')
    a('s_min_u32 s90, s90, 20000')
    lp = a.newlabel('ro_loop')
    a.label(lp)
    a('s_memrealtime s[94:95]')
    a('s_waitcnt lgkmcnt(0)')
    a('s_sub_u32 s91, s94, s92')
    a('s_cmp_lt_u32 s91, s90')
    a('s_cbranch_scc1 %s' % lp)
    a.label(lab)
```

```python
from common import *

LDS_W = 65536
LDS_CS = 0
LDS_RS = 1536
LDS_MF = 2048
K1_LDS = 114688

AF = 16
WF = [32, 44]
ACC = 64
VAB, VAC, VWB, VWC = 112, 116, 120, 121
VL = 122
T = 124
RSV = 140
CSR = 156
PKS = [20, 32, 44]
K1_VGPR = 168
XA, XB, WR = 96, 100, 104
FA, FB = 140, 148
XNA, XNB = 108, 112
VN = 116
GR = 118
PUB = 156
LA = 16
LU = 32
LW = 40
SELR = 52
CS = 56
SS = 68
SQ = 72
VDA0, VDA1, VDW = 76, 77, 78
LAB, LAC, LWB, LWC = 82, 86, 90, 91


def dma_setup(a, sc):
    a('s_add_u32 s26, %s, s21' % sc)
    a('s_and_b32 s26, s26, 7')
    a('s_and_b32 s27, %s, 3' % sc)
    a('s_mul_i32 s28, s26, %d' % (64 * 3072))
    a('s_add_u32 s28, s28, s23')
    a('s_mul_i32 s29, s27, 12288')
    a('s_add_u32 s29, s29, s33')
    a('s_lshl_b32 s30, s26, 7')
    a('s_add_u32 s30, s30, s22')
    a('s_lshl_b32 s31, s27, 14')
    a('s_add_u32 s31, s31, s32')


def dma_pieces():
    out = []
    for t in range(3):
        p = ['s_mov_b32 m0, s29' if t == 0 else 's_add_u32 m0, s29, %d' % (t * 1024)]
        p.append('buffer_load_dwordx4 v%d, s[8:11], s28 offen lds' % (VDW + t))
        out.append(p)
    for t in range(4):
        p = ['s_mov_b32 m0, s31'] if t == 0 else ['s_add_u32 m0, s31, %d' % (t * 1024), 's_add_u32 s30, s30, 8192']
        p.append('buffer_load_dwordx4 v%d, s[4:7], s30 offen lds' % (VDA0 + (t & 1)))
        out.append(p)
    return out


def wreads(a, t, st):
    if getattr(a, 'x_nowr', 0):
        a('s_nop 0')
        return
    for ct in range(3):
        for j4 in range(2):
            a('ds_read_b64_tr_b16 %s, v%d offset:%d' % (vr(WF[st] + ct * 4 + j4 * 2, 2), VWC, t * 3072 + j4 * 768 + ct * 64))


def chunk_ops(last=False, tail=None):
    ops = []
    for t in range(4):
        if t == 2:
            ops.append(('B',))
            if last:
                ops += tail
        for ct in range(3):
            ops.append(('M', t, ct))
            if t < 2 or not last:
                ops += [('W', (t + 2) & 3, ct, 0), ('W', (t + 2) & 3, ct, 1)]
            if not last:
                if t == 2:
                    ops.append(('A', ct))
                if t == 3 and ct == 2:
                    ops.append(('A', 3))
            if t == 0 and not last:
                if ct == 0:
                    ops += [('X', 's_add_u32 s24, s24, 1'), ('X', 's_and_b32 s27, s24, 3'), ('X', 's_lshl_b32 s28, s27, 14'),
                            ('X', 's_mul_i32 s29, s27, 12288')]
                else:
                    ops += [('X', 'v_add_u32 v%d, s28, v%d' % (VAC + 2 * ct - 2 + k, VAB + 2 * ct - 2 + k)) for k in range(2)]
            if t == 1 and ct == 2 and not last:
                ops.append(('X', 'v_add_u32 v%d, s29, v%d' % (VWC, VWB)))
    return ops


def emit_chunk(a, ops, prev, orient, opt):
    ds = [o for o in prev if o[0] in 'WAD']
    lastwait = 99
    for o in ops:
        if o[0] == 'M':
            t, ct = o[1], o[2]
            pos = max(max(k for k, d in enumerate(ds) if d[:3] == ('W', t, ct)), max(k for k, d in enumerate(ds) if d == ('A', t)))
            n = len(ds) - 1 - pos
            if n < lastwait:
                a('s_waitcnt lgkmcnt(%d)' % min(n, 15))
                lastwait = n
            w, x, d = vr(WF[t & 1] + ct * 4, 4), vr(AF + t * 4, 4), vr(ACC + ct * 16, 16)
            if orient[ct] in 'NQK':
                a('v_mfma_f32_32x32x16_bf16 %s, %s, %s, %s' % (d, w, x, d))
            else:
                a('v_mfma_f32_32x32x16_bf16 %s, %s, %s, %s' % (d, x, w, d))
        elif o[0] == 'W':
            t, ct, j4 = o[1:4]
            a('ds_read_b64_tr_b16 %s, v%d offset:%d' % (vr(WF[t & 1] + ct * 4 + j4 * 2, 2), VWC, t * 3072 + j4 * 768 + ct * 64))
            ds.append(o)
            lastwait += 1
        elif o[0] == 'A':
            a('ds_read_b128 %s, v%d' % (vr(AF + o[1] * 4, 4), VAC + o[1]))
            ds.append(o)
            lastwait += 1
        elif o[0] == 'D':
            a(o[1])
            ds.append(o)
            lastwait += 1
        elif o[0] == 'B':
            a('s_barrier')
        else:
            a(o[1])
    return ds


def mainloop(a, orient, tag, opt):
    top = 'k1_loop_' + tag
    a.label(top)
    emit_chunk(a, chunk_ops(), chunk_ops(), orient, opt)
    a('s_cmp_lt_u32 s24, 7')
    a('s_cbranch_scc1 %s' % top)


def epilogue(a, types, tag, opt):
    l = 'v%d' % VL
    MF = AF
    rs, rq = T, T + 2
    a.label('k1_epi_' + tag)

    CSF = RSV - 0
    tail = [('D', 'ds_read_b32 v%d, v7 offset:%d' % (T + 4, LDS_MF))]
    tail += [('D', 'ds_read_b128 %s, v6 offset:%d' % (vr(CSR + ct * 4, 4), LDS_CS + ct * 512)) for ct in range(3)]
    tail += [('D', 'ds_read_b32 v%d, v7 offset:%d' % (rs, LDS_RS))]
    if 'V' in types:
        tail += [('D', 'ds_read_b128 %s, v9 offset:%d' % (vr(RSV + q * 4, 4), LDS_RS + q * 32)) for q in range(4)]
    ops = chunk_ops(True, tail)
    k = [n for n, o in enumerate(ops) if o == ('M', 3, 0)][0]
    ops[k:k] = [('X', 's_waitcnt lgkmcnt(0)')] + [('X', 'v_cndmask_b32 v%d, 0, v%d, s[36:37]' % (MF + i, T + 4)) for i in range(4)]
    if opt.get('stamp'):
        k = ops.index(('B',))
        ops[k:k + 1] = [('X', 's_memtime s[74:75]'), ('X', 's_waitcnt lgkmcnt(0)'), ('B',), ('X', 's_memtime s[76:77]'), ('X', 's_waitcnt lgkmcnt(0)')]
        stamp(a, opt, 4)
    emit_chunk(a, ops, chunk_ops(), types, opt)
    for ct in range(3):
        d = vr(ACC + ct * 16, 16)
        if types[ct] == 'V':
            a('v_mfma_f32_32x32x16_bf16 %s, %s, %s, %s' % (d, vr(MF, 4), vr(CSR + ct * 4, 4), d))
        else:
            a('v_mfma_f32_32x32x16_bf16 %s, %s, %s, %s' % (d, vr(CSR + ct * 4, 4), vr(MF, 4), d))
    if 'Q' in types:
        a('v_mul_f32 v%d, %s, v%d' % (rq, f2u(QSCALE), rs))
    stamp(a, opt, 7)
    for ct in range(3):
        A0 = ACC + ct * 16
        P = PKS[ct]
        ty = types[ct]
        a('s_add_u32 s45, s44, %d' % ct)
        a('s_and_b32 s45, s45, 15')
        if ty == 'Q':
            a('s_lshl_b32 s50, s45, 17')
            a('s_lshl_b32 s51, s35, 10')
            a('s_add_u32 s50, s50, s51')
            a('s_add_u32 s51, s50, 0x10000')
        else:
            a('s_lshl_b32 s50, s45, 18')
            a('s_lshl_b32 s51, s35, 11')
            a('s_add_u32 s50, s50, s51')
            a('s_add_u32 s50, s50, 0x%x' % (KV + (1024 if ty == 'V' else 0)))
            a('s_add_u32 s51, s50, 0x20000')
        for i in range(8):
            if ty == 'V':
                a('v_pk_mul_f32 %s, %s, %s' % (vr(A0 + 2 * i, 2), vr(A0 + 2 * i, 2), vr(RSV + 2 * i, 2)))
            else:
                a('v_pk_mul_f32 %s, %s, %s op_sel_hi:[1,0]' % (vr(A0 + 2 * i, 2), vr(A0 + 2 * i, 2), vr(rq if ty == 'Q' else rs, 2)))
        for i in range(8):
            a('v_cvt_pk_bf16_f32 v%d, v%d, v%d' % (P + i, A0 + 2 * i, A0 + 2 * i + 1))
        fl = opt.get('k1st', 'sc1')
        if ty == 'V':
            a('buffer_store_dwordx4 %s, v10, s[12:15], s50 offen %s' % (vr(P, 4), fl))
            a('buffer_store_dwordx4 %s, v10, s[12:15], s50 offen offset:256 %s' % (vr(P + 4, 4), fl))
        else:
            a('buffer_store_dwordx4 %s, v4, s[12:15], s50 offen %s' % (vr(P, 4), fl))
            a('buffer_store_dwordx4 %s, v4, s[12:15], s51 offen %s' % (vr(P + 4, 4), fl))
    ks = [ct for ct in range(3) if types[ct] == 'K']
    if ks:
        for ct in ks:
            a('v_mov_b32 v%d, 0' % (T + 6 + 2 * ct))
            a('v_mov_b32 v%d, 0' % (T + 7 + 2 * ct))
        for i in range(4):
            for ct in ks:
                P = PKS[ct]
                a('v_dot2c_f32_bf16 v%d, v%d, v%d' % (T + 6 + 2 * ct, P + i, P + i))
                a('v_dot2c_f32_bf16 v%d, v%d, v%d' % (T + 7 + 2 * ct, P + 4 + i, P + 4 + i))
        for ct in ks:
            a('v_permlane32_swap_b32 v%d, v%d' % (T + 6 + 2 * ct, T + 7 + 2 * ct))
        for ct in ks:
            a('v_add_f32 v%d, v%d, v%d' % (T + 6 + 2 * ct, T + 6 + 2 * ct, T + 7 + 2 * ct))
        for s in ['quad_perm:[1,0,3,2] row_mask:0xf bank_mask:0xf', 'quad_perm:[2,3,0,1] row_mask:0xf bank_mask:0xf',
                  'row_half_mirror row_mask:0xf bank_mask:0xf', 'row_mirror row_mask:0xf bank_mask:0xf',
                  'row_bcast:15 row_mask:0xa bank_mask:0xf']:
            for ct in ks:
                r = 'v%d' % (T + 6 + 2 * ct)
                a('v_max_f32_dpp %s, %s, %s %s' % (r, r, r, s))
        a('s_add_u32 s45, s44, %d' % ks[0])
        a('s_and_b32 s45, s45, 15')
        a('s_lshl_b32 s50, s45, 9')
        a('s_lshl_b32 s51, s35, 2')
        a('s_add_u32 s50, s50, s51')
        a('s_add_u32 s50, s50, 0x%x' % KNORM)
        a('s_mov_b32 exec_lo, 0x80000000')
        a('s_mov_b32 exec_hi, 0x80000000')
        for n, ct in enumerate(ks):
            a('buffer_store_dword v%d, v11, s[12:15], s50 offen offset:%d' % (T + 6 + 2 * ct, 512 * n))
    stamp(a, opt, 8)
    if opt.get('stamp'):
        a('s_waitcnt vmcnt(0)')
    stamp(a, opt, 9)
    stamp_rt(a, opt, 11)
    dbg_flush(a, opt, 0, 's18', [10, 11, 1, 2, 6, 9], 0)
    stamp_flush(a, opt, 0, 's[12:15]', 's17', 12)
    a('s_endpgm')


def mini_job(a, opt, bar):
    l = 'v%d' % VL
    sa, sb = 'v%d' % T, 'v%d' % (T + 1)
    a('v_mov_b32 %s, 0' % sa)
    a('v_mov_b32 %s, 0' % sb)
    for i in range(4):
        a('v_dot2c_f32_bf16 %s, s34, v%d' % (sa, XA + i))
        a('v_dot2c_f32_bf16 %s, s34, v%d' % (sb, XB + i))
    for (x, f) in ((XA, FA), (XB, FB)):
        for i in range(4):
            a('v_lshlrev_b32 v%d, 16, v%d' % (f + 2 * i, x + i))
            a('v_and_b32 v%d, 0xffff0000, v%d' % (f + 2 * i + 1, x + i))
    wave_reduce(a, [sa, sb])
    a('v_readlane_b32 s41, %s, 63' % sa)
    a('v_readlane_b32 s42, %s, 63' % sb)
    ma, mb = 'v%d' % (T + 2), 'v%d' % (T + 3)
    a('v_mov_b32 v%d, %s' % (T + 4, f2u(1.0 / 512)))
    a('v_mul_f32 %s, s41, v%d' % (ma, T + 4))
    a('v_mul_f32 %s, s42, v%d' % (mb, T + 4))
    a('v_mov_b32 %s, 0' % sa)
    a('v_mov_b32 %s, 0' % sb)
    for i in range(8):
        a('v_sub_f32 v%d, v%d, %s' % (T + 6, FA + i, ma))
        a('v_sub_f32 v%d, v%d, %s' % (T + 7, FB + i, mb))
        a('v_fmac_f32 %s, v%d, v%d' % (sa, T + 6, T + 6))
        a('v_fmac_f32 %s, v%d, v%d' % (sb, T + 7, T + 7))
    bar(2)
    wave_reduce(a, [sa, sb])
    bf16r(a, ma, ma)
    bf16r(a, mb, mb)
    a('v_readlane_b32 s41, %s, 63' % sa)
    a('v_readlane_b32 s42, %s, 63' % sb)
    for (f, m) in ((FA, ma), (FB, mb)):
        for i in range(8):
            a('v_sub_f32 v%d, v%d, %s' % (f + i, f + i, m))
    a('v_mul_f32 %s, s41, v%d' % (sa, T + 4))
    a('v_mul_f32 %s, s42, v%d' % (sb, T + 4))
    for s_ in (sa, sb):
        bf16r(a, s_, s_)
    for s_ in (sa, sb):
        a('v_add_f32 %s, %s, %s' % (s_, f2u(1e-5), s_))
    for s_ in (sa, sb):
        bf16r(a, s_, s_)
    for s_ in (sa, sb):
        a('v_sqrt_f32 %s, %s' % (s_, s_))
    for (f, xn) in ((FA, XNA), (FB, XNB)):
        for i in range(4):
            a('v_cvt_pk_bf16_f32 v%d, v%d, v%d' % (xn + i, f + 2 * i, f + 2 * i + 1))
    for s_ in (sa, sb):
        bf16r(a, s_, s_)
    a('v_lshrrev_b32 v%d, 16, %s' % (PUB, ma))
    a('v_lshrrev_b32 v%d, 16, %s' % (PUB + 2, mb))
    a('v_or_b32 v%d, v%d, %s' % (PUB, PUB, sa))
    a('v_or_b32 v%d, v%d, %s' % (PUB + 2, PUB + 2, sb))
    for s_ in (sa, sb):
        a('v_rcp_f32 %s, %s' % (s_, s_))
    bar(3)
    for (f, xn) in ((FA, XNA), (FB, XNB)):
        for i in range(4):
            a('v_lshlrev_b32 v%d, 16, v%d' % (f + 2 * i, xn + i))
            a('v_and_b32 v%d, 0xffff0000, v%d' % (f + 2 * i + 1, xn + i))
    for (f, s_) in ((FA, sa), (FB, sb)):
        for i in range(8):
            a('v_mul_f32 v%d, v%d, %s' % (f + i, f + i, s_))
    for (f, xn) in ((FA, XNA), (FB, XNB)):
        for i in range(4):
            a('v_cvt_pk_bf16_f32 v%d, v%d, v%d' % (xn + i, f + 2 * i, f + 2 * i + 1))
    bar(4)
    a('v_mov_b32 %s, 0' % sa)
    a('v_mov_b32 %s, 0' % sb)
    for i in range(4):
        a('v_dot2c_f32_bf16 %s, v%d, v%d' % (sa, XNA + i, WR + i))
        a('v_dot2c_f32_bf16 %s, v%d, v%d' % (sb, XNB + i, WR + i))
    wave_reduce(a, [sa, sb])
    a('v_cvt_pk_bf16_f32 %s, %s, %s' % (sa, sa, sb))
    bar(5)
    a('v_readlane_b32 s41, %s, 63' % sa)
    for (k, srcop) in ((0, 's_lshl_b32 s42, s41, 16'), (1, 's_and_b32 s42, s41, 0xffff0000')):
        a(srcop)
        a('s_ashr_i32 s43, s42, 31')
        a('s_and_b32 s43, s43, 0x7fff0000')
        a('s_xor_b32 s42, s42, s43')
        a('s_xor_b32 s42, s42, 0x80000000')
        a('s_sub_u32 s43, %d, s38' % (0x8000 + 2047 - k))
        a('s_or_b32 s42, s42, s43')
        a('v_mov_b32 v%d, s42' % (T + 2 + k))


def mini_stores(a, opt):
    a('s_add_u32 s39, s39, 0x%x' % XN)
    a('s_add_u32 s40, s39, 1024')
    a('buffer_store_dwordx4 %s, v4, s[12:15], s39 offen sc1' % vr(XNA, 4))
    a('buffer_store_dwordx4 %s, v4, s[12:15], s40 offen sc1' % vr(XNB, 4))
    a('s_lshl_b32 s41, s38, 2')
    a('s_add_u32 s41, s41, 0x%x' % KEY)
    a('s_mov_b64 exec, 1')
    a('buffer_store_dwordx2 %s, v3, s[12:15], s41 offen sc1' % vr(T + 2, 2))
    a('s_mov_b64 exec, -1')


def reset_handoffs(a, opt):
    l = 'v%d' % VL
    for r in range(16, 20):
        a('v_mov_b32 v%d, -1' % r)
    a('v_mov_b32 v20, 0')
    a('v_mov_b32 v21, 0')
    a('v_lshlrev_b32 v5, 3, %s' % l)
    a('s_lshl_b32 s41, s2, 7')
    a('s_lshl_b32 s42, s18, 5')
    a('s_add_u32 s41, s41, s42')
    a('s_add_u32 s41, s41, 0x%x' % HB)
    a('s_mov_b64 exec, 15')
    a('buffer_store_dwordx2 v[16:17], v5, s[12:15], s41 offen')
    if opt.get('fuse', 1):
        a('s_lshl_b32 s42, s2, 2')
        a('s_add_u32 s42, s42, s18')
        a('s_lshl_b32 s41, s42, 4')
        a('s_add_u32 s41, s41, 0x%x' % GSEL)
        a('s_lshl_b32 s42, s42, 11')
        a('s_add_u32 s42, s42, 0x%x' % OF)
        a('s_mov_b64 exec, 3')
        a('buffer_store_dwordx2 v[16:17], v5, s[12:15], s41 offen')
        a('s_mov_b64 exec, -1')
        a('buffer_store_dwordx4 v[16:19], v4, s[12:15], s42 offen sc1')
        a('buffer_store_dwordx4 v[16:19], v4, s[12:15], s42 offen offset:1024 sc1')
        a('s_mov_b64 exec, 15')
    a('s_or_b32 s42, s2, s18')
    a('s_cmp_lg_u32 s42, 0')
    a('s_cbranch_scc1 k1_nosel')
    a('s_mov_b32 s41, 0x%x' % SEL)
    a('buffer_store_dwordx2 v[20:21], v5, s[12:15], s41 offen')
    a.label('k1_nosel')
    a('s_mov_b64 exec, -1')


def gen_dma(a, opt):
    l = 'v%d' % VL
    a.label('k1_dma')
    a('v_lshrrev_b32 v5, 3, %s' % l)
    a('v_lshrrev_b32 v6, 4, %s' % l)
    a('v_and_b32 v7, 7, %s' % l)
    a('v_xor_b32 v7, v7, v6')
    a('v_lshlrev_b32 v7, 4, v7')
    a('v_lshl_add_u32 v%d, v5, 10, v7' % VDA0)
    a('v_xor_b32 v%d, 64, v%d' % (VDA1, VDA0))
    a('s_movk_i32 s27, 0xaab')
    a('s_movk_i32 s28, %d' % (3072 - 192))
    for t in range(3):
        a('v_add_u32 v8, %d, %s' % (64 * t, l))
        a('v_mul_u32_u24 v9, s27, v8')
        a('v_lshrrev_b32 v9, 15, v9')
        a('v_lshlrev_b32 v8, 4, v8')
        a('v_mad_u32_u24 v%d, v9, s28, v8' % (VDW + t))
    a('s_mul_i32 s23, s18, %d' % (16 * 3072))
    a('s_mul_i32 s27, s20, 192')
    a('s_add_u32 s23, s23, s27')
    a('s_mul_i32 s33, s18, 3072')
    a('s_add_u32 s33, s33, %d' % LDS_W)
    a('s_mov_b32 s24, 0')
    a('s_mov_b32 s48, s25')
    a('s_mov_b32 s49, s26')
    a('s_waitcnt lgkmcnt(0)')
    stamp(a, opt, 1)

    NS = opt.get('k1ns', 4)

    def issue(c):
        if opt.get('k1rot', 0):
            a('s_mov_b32 s25, %d' % c)
            dma_setup(a, 's25')
            for p in dma_pieces():
                for x in p:
                    a(x)
            return
        st = c % NS
        a('s_add_u32 s28, s23, %d' % (c * 64 * 3072))
        for t in range(3):
            a('s_add_u32 m0, s33, %d' % (st * 12288 + t * 1024))
            a('buffer_load_dwordx4 v%d, s[8:11], s28 offen lds' % (VDW + t))
        for t in range(4):
            a('s_add_u32 m0, s32, %d' % (st * 16384 + t * 1024))
            a('s_add_u32 s30, s22, %d' % (c * 128 + t * 8192))
            a('buffer_load_dwordx4 v%d, s[4:7], s30 offen lds' % (VDA0 + (t & 1)))
    issue(0)
    issue(1)
    nxt = 2
    for k in range(8):
        a('s_waitcnt vmcnt(%d)' % (7 * (nxt - k - 1)))
        a('s_barrier')
        stamp(a, opt, 2 + k)
        lim = min(8, max(k + NS - 1, NS if opt.get('k1boost', 1) else 0))
        while nxt < lim:
            issue(nxt)
            nxt += 1
    if opt.get('stamp'):
        a('s_barrier')
    stamp_rt(a, opt, 11)
    stamp_flush(a, opt, 0, 's[12:15]', 's17', 12)
    a('s_endpgm')


def a_read_addr(a, base, cur, l):
    a('v_and_b32 v8, 31, %s' % l)
    a('v_lshrrev_b32 v9, 5, %s' % l)
    a('v_bfe_u32 v10, %s, 1, 3' % l)
    a('v_xor_b32 v10, v10, v9')
    a('v_lshlrev_b32 v11, 7, v8')
    a('v_add_u32 v11, s32, v11')
    for tp in range(4):
        a('v_xor_b32 v13, %d, v10' % (2 * tp))
        a('v_lshl_add_u32 v%d, v13, 4, v11' % (base + tp))
        a('v_mov_b32 v%d, v%d' % (cur + tp, base + tp))


def w_read_addr(a, base, cur, l, sbase):
    a('v_bfe_u32 v12, %s, 2, 2' % l)
    a('v_lshl_add_u32 v12, v9, 3, v12')
    a('v_mul_u32_u24 v12, 192, v12')
    a('v_and_b32 v13, 16, %s' % l)
    a('v_lshl_add_u32 v12, v13, 1, v12')
    a('v_and_b32 v13, 3, %s' % l)
    a('v_lshl_add_u32 v12, v13, 3, v12')
    a('v_add_u32 v%d, %s, v12' % (base, sbase))
    a('v_mov_b32 v%d, v%d' % (cur, base))


def colsum_chunk(a, opt):
    for ct in range(3):
        for j4 in range(2):
            a('ds_read_b64_tr_b16 %s, v%d offset:%d' % (vr(LW + ct * 4 + j4 * 2, 2), LWC, j4 * 768 + ct * 64))
    a('s_add_u32 s24, s24, 1')
    a('s_and_b32 s46, s24, 3')
    a('s_mul_i32 s46, s46, 12288')
    a('v_add_u32 v%d, s46, v%d' % (LWC, LWB))
    a('s_waitcnt lgkmcnt(0)')
    for ct in range(3):
        a('v_mfma_f32_16x16x32_bf16 %s, %s, %s, %s' % (vr(CS + ct * 4, 4), vr(SELR, 4), vr(LW + ct * 4, 4), vr(CS + ct * 4, 4)))


POLLS = 0x4000


def touch(a, opt):
    l = 'v%d' % VL
    a('s_lshr_b32 s27, s25, 1')
    a('s_lshl_b32 s27, s27, 9')
    a('s_lshl_b32 s28, s26, 4')
    a('s_add_u32 s27, s27, s28')
    a('s_lshl_b32 s27, s27, 10')
    a('s_lshl_b32 s28, s18, 7')
    a('s_add_u32 s27, s27, s28')
    a('s_add_u32 s27, s27, 512')
    a('v_lshlrev_b32 v10, 10, %s' % l)
    a('s_and_b32 s28, s25, 1')
    a('s_mul_i32 s28, s28, 1536')
    a('s_mul_i32 s29, s26, 6144')
    a('s_add_u32 s28, s28, s29')
    a('s_add_u32 s29, s18, 4')
    a('s_mul_i32 s29, s29, %d' % (64 * 3072))
    a('s_add_u32 s28, s28, s29')
    a('v_cmp_le_u32 vcc, 12, %s' % l)
    a('v_mov_b32 v11, %d' % (3072 - 1536))
    a('v_cndmask_b32 v11, 0, v11, vcc')
    a('v_lshl_add_u32 v11, %s, 7, v11' % l)
    a('s_mov_b64 exec, 0xffff')
    a('buffer_load_dword v94, v10, s[4:7], s27 offen')
    a('s_mov_b64 exec, 0xffffff')
    a('buffer_load_dword v95, v11, s[8:11], s28 offen')
    a('s_mov_b64 exec, -1')


def gen_aux(a, opt):
    l = 'v%d' % VL
    a.label('k1_aux')
    a('s_lshl_b32 s38, s19, 7')
    a('s_lshl_b32 s27, s20, 3')
    a('s_add_u32 s38, s38, s27')
    a('s_lshl_b32 s27, s18, 1')
    a('s_add_u32 s38, s38, s27')
    a('s_lshl_b32 s39, s38, 10')
    a('s_add_u32 s40, s39, 1024')
    a('v_lshlrev_b32 v4, 4, %s' % l)
    a('v_mov_b32 v3, 0')
    a('s_or_b32 s42, s2, s18')
    a('s_waitcnt lgkmcnt(0)')
    a('s_cmp_lg_u32 s42, 0')
    a('s_cbranch_scc1 k1_nononce')
    a('s_or_b32 s56, s56, 1')
    a('v_mov_b32 v5, s56')
    a('s_mov_b64 exec, 1')
    a('global_store_dword v3, v5, s[54:55] sc1')
    a('s_mov_b64 exec, -1')
    a.label('k1_nononce')
    a('buffer_load_dwordx4 %s, v4, s[4:7], s39 offen' % vr(XA, 4))
    a('buffer_load_dwordx4 %s, v4, s[4:7], s40 offen' % vr(XB, 4))
    a('global_load_dwordx4 %s, v4, s[52:53]' % vr(WR, 4))
    a('s_mul_i32 s33, s18, 3072')
    a('s_add_u32 s33, s33, %d' % LDS_W)
    a('v_lshrrev_b32 v9, 5, %s' % l)
    w_read_addr(a, LWB, LWC, l, 's33')
    a('v_and_b32 v13, 15, %s' % l)
    a('v_bfe_u32 v14, %s, 4, 1' % l)
    a('v_cmp_eq_u32 vcc, v13, v14')
    a('v_mov_b32 v13, s34')
    for i in range(4):
        a('v_cndmask_b32 v%d, 0, v13, vcc' % (SELR + i))
    for i in range(CS, CS + 12):
        a('v_mov_b32 v%d, 0' % i)
    a('v_and_b32 v6, 31, %s' % l)
    a('v_lshlrev_b32 v7, 2, v6')
    a('v_lshl_add_u32 v7, s18, 7, v7')
    a('v_lshlrev_b32 v8, 3, v6')
    a('v_lshl_add_u32 v9, s18, 2, v4')
    a('s_lshl_b32 s47, s35, 8')
    a('s_add_u32 s47, s47, 0x%x' % STAT)
    a('s_mov_b32 s24, 0')
    a('s_waitcnt vmcnt(0)')
    stamp(a, opt, 1)

    a('s_mov_b32 s49, 0')
    a('s_lshl_b32 s50, s38, 3')
    a('s_add_u32 s50, s50, 0x%x' % STAT)

    def try_publish(block):
        done, again, got = a.newlabel('k1_pubd'), a.newlabel('k1_puba'), a.newlabel('k1_pubg')
        a('s_cmp_lg_u32 s49, 0')
        a('s_cbranch_scc1 %s' % done)
        a('s_mov_b32 s48, 0')
        a.label(again)
        a('s_waitcnt vmcnt(0)')
        a('v_readfirstlane_b32 s49, v%d' % VN)
        a('s_cmp_lg_u32 s49, 0')
        a('s_cbranch_scc1 %s' % got)
        a('global_load_dword v%d, v3, s[54:55] sc1' % VN)
        if block:
            a('s_add_u32 s48, s48, 1')
            a('s_cmp_lt_u32 s48, %d' % POLLS)
            a('s_cbranch_scc1 %s' % again)
        a('s_branch %s' % done)
        a.label(got)
        a('v_mov_b32 v%d, s49' % (PUB + 1))
        a('v_mov_b32 v%d, s49' % (PUB + 3))
        a('s_mov_b64 exec, 1')
        a('buffer_store_dwordx4 %s, v3, s[12:15], s50 offen sc1' % vr(PUB, 4))
        a('s_mov_b64 exec, -1')
        stamp(a, opt, 3)
        a.label(done)

    def bar(k):
        if k == 2:
            a('global_load_dword v%d, v3, s[54:55] sc1' % VN)
            stamp(a, opt, 2)
        if k >= 3:
            try_publish(False)
        a('s_barrier')
        if opt.get('k1pf', 0) == k:
            touch(a, opt)
        colsum_chunk(a, opt)
    mini_job(a, opt, bar)
    stamp(a, opt, 4)
    try_publish(True)
    a('s_barrier')
    colsum_chunk(a, opt)
    a('s_barrier')
    colsum_chunk(a, opt)
    a('buffer_load_dwordx2 %s, v8, s[12:15], s47 offen sc1' % vr(GR, 2))
    a('s_barrier')
    colsum_chunk(a, opt)
    a('s_mov_b32 s48, 0')
    a.label('k1_gpoll')
    a('s_waitcnt vmcnt(0)')
    a('v_cmp_ne_u32 vcc, s49, v%d' % (GR + 1))
    a('s_cbranch_vccz k1_ggot')
    a('buffer_load_dwordx2 %s, v8, s[12:15], s47 offen sc1' % vr(GR, 2))
    a('s_add_u32 s48, s48, 1')
    a('s_cmp_lt_u32 s48, %d' % POLLS)
    a('s_cbranch_scc1 k1_gpoll')
    a('s_branch k1_local')
    a.label('k1_ggot')
    a('s_cmp_eq_u32 s49, 0')
    a('s_cbranch_scc1 k1_local')
    if opt.get('force_local'):
        a('s_branch k1_local')
    a.label('k1_have')
    a('v_and_b32 v10, 0xffff0000, v%d' % GR)
    a('v_and_b32 v11, 0xffff, v%d' % GR)
    a('v_rcp_f32 v10, v10')
    a('v_xor_b32 v11, 0x8000, v11')
    a('v_lshl_or_b32 v11, v11, 16, v11')
    a('ds_write_b32 v7, v10 offset:%d' % LDS_RS)
    a('ds_write_b32 v7, v11 offset:%d' % LDS_MF)
    mini_stores(a, opt)
    stamp(a, opt, 5)
    a('s_barrier')
    colsum_chunk(a, opt)
    for step in range(3):
        for ct in range(3):
            for hh in range(2):
                c = 'v%d' % (CS + ct * 4 + hh)
                u = 'v%d' % (CS + ct * 4 + 2 + hh)
                a(['v_and_b32 %s, 0xffff0000, %s' % (u, c), 'v_sub_f32 %s, %s, %s' % (c, c, u),
                   'v_cvt_pk_bf16_f32 %s, %s, %s' % (c, u, c)][step])
    a('s_mov_b64 exec, 0xffff')
    for ct in range(3):
        for hh in range(2):
            a('ds_write_b32 v9, v%d offset:%d' % (CS + ct * 4 + hh, LDS_CS + (ct * 32 + hh * 16) * 16))
    a('s_waitcnt lgkmcnt(0)')
    stamp(a, opt, 6)
    a('s_barrier')
    stamp(a, opt, 9)
    stamp_rt(a, opt, 11)
    stamp_flush(a, opt, 0, 's[12:15]', 's17', 12)
    a('s_endpgm')
    a.label('k1_local')
    mean, var, t0, t1 = 'v10', 'v11', 'v12', 'v13'
    a('s_waitcnt vmcnt(0)')
    a('v_lshrrev_b32 v14, 5, %s' % l)
    a('v_lshlrev_b32 v15, 10, v6')
    a('v_lshl_add_u32 v15, v14, 9, v15')
    a('v_mov_b32 %s, 0' % mean)
    for ps in range(2):
        acc = 'v14'
        a('v_mov_b32 %s, 0' % acc)
        a('s_mov_b32 s27, s22')
        a('s_add_u32 s28, s22, 512')
        a.label('k1_loc_%d' % ps)
        a('buffer_load_dwordx4 %s, v15, s[4:7], s27 offen' % vr(XA, 4))
        a('s_waitcnt vmcnt(0)')
        for i in range(4):
            a('v_lshlrev_b32 %s, 16, v%d' % (t0, XA + i))
            a('v_and_b32 %s, 0xffff0000, v%d' % (t1, XA + i))
            if ps == 0:
                a('v_add_f32 %s, %s, %s' % (acc, acc, t0))
                a('v_add_f32 %s, %s, %s' % (acc, acc, t1))
            else:
                a('v_sub_f32 %s, %s, %s' % (t0, t0, mean))
                a('v_sub_f32 %s, %s, %s' % (t1, t1, mean))
                a('v_fmac_f32 %s, %s, %s' % (acc, t0, t0))
                a('v_fmac_f32 %s, %s, %s' % (acc, t1, t1))
        a('s_add_u32 s27, s27, 16')
        a('s_cmp_lt_u32 s27, s28')
        a('s_cbranch_scc1 k1_loc_%d' % ps)
        a('v_mov_b32 %s, %s' % (t0, acc))
        a('v_permlane32_swap_b32 %s, %s' % (t0, acc))
        a('v_add_f32 %s, %s, %s' % (acc, acc, t0))
        a('v_mul_f32 %s, %s, %s' % (mean if ps == 0 else var, f2u(1.0 / 512), acc))
    bf16r(a, var, var)
    a('v_add_f32 %s, %s, %s' % (var, f2u(1e-5), var))
    bf16r(a, var, var)
    a('v_sqrt_f32 %s, %s' % (var, var))
    bf16r(a, var, var)
    bf16r(a, mean, mean)
    a('v_lshrrev_b32 %s, 16, %s' % (mean, mean))
    a('v_or_b32 v%d, %s, %s' % (GR, mean, var))
    a('s_branch k1_have')


def gen_k1(a, opt):
    a.x_nowr = opt.get('x_nowr', 0)
    l = 'v%d' % VL
    code_prefetch(a, 'v1', 'v2', 36, stride_log2=6)
    a('s_cmp_ge_u32 s2, 256')
    a('s_cbranch_scc1 k1_end')
    stamp(a, opt, 0)
    stamp_rt(a, opt, 10)
    a('s_load_dwordx2 s[4:5], s[0:1], 0')
    a('s_load_dwordx2 s[8:9], s[0:1], 8')
    a('s_load_dwordx2 s[52:53], s[0:1], 32')
    a('s_load_dwordx2 s[12:13], s[0:1], 80')
    a('s_load_dwordx2 s[54:55], s[0:1], 72')
    a('s_memrealtime s[56:57]')
    a('v_lshrrev_b32 v3, 6, v0')
    a('v_and_b32 v%d, 63, v0' % VL)
    a('v_readfirstlane_b32 s17, v3')
    a('s_mov_b32 s6, 0x200000')
    a('s_mov_b32 s7, 0x20000')
    a('s_mov_b32 s10, %d' % (512 * 3072))
    a('s_mov_b32 s11, 0x20000')
    a('s_mov_b32 s14, 0x%x' % WS_USED)
    a('s_mov_b32 s15, 0x20000')
    a('s_mov_b32 s34, 0x%x' % ONES_BF)
    a('s_and_b32 s18, s17, 3')
    a('s_and_b32 s25, s2, 7')
    a('s_lshr_b32 s26, s2, 3')
    a('s_lshr_b32 s19, s25, 1')
    a('s_lshl_b32 s19, s19, 2')
    a('s_and_b32 s27, s26, 3')
    a('s_add_u32 s19, s19, s27')
    a('s_and_b32 s20, s25, 1')
    a('s_lshl_b32 s20, s20, 3')
    a('s_lshr_b32 s27, s26, 2')
    a('s_add_u32 s20, s20, s27')
    rot = opt.get('k1rot', 0)
    if rot == 1:
        a('s_lshl_b32 s21, s19, 1')
        a('s_add_u32 s21, s21, s20')
    elif rot == 2:
        a('s_xor_b32 s21, s19, s20')
        a('s_and_b32 s21, s21, 1')
        a('s_lshl_b32 s21, s21, 2')
    else:
        a('s_mov_b32 s21, 0')
    a('s_lshl_b32 s35, s19, 2')
    a('s_add_u32 s35, s35, s18')
    a('s_lshl_b32 s22, s35, 15')
    a('s_lshl_b32 s32, s18, 12')
    a('s_cmp_lt_u32 s17, 4')
    a('s_cbranch_scc1 k1_aux')
    if opt.get('k1cprio'):
        a('s_setprio %d' % opt['k1cprio'])
    a('s_cmp_lt_u32 s17, 8')
    a('s_cbranch_scc1 k1_dma')
    a('v_lshlrev_b32 v4, 4, %s' % l)
    a_read_addr(a, VAB, VAC, l)
    a('s_mov_b32 s27, %d' % LDS_W)
    w_read_addr(a, VWB, VWC, l, 's27')
    a('v_lshlrev_b32 v6, 4, v8')
    a('v_lshlrev_b32 v7, 2, v8')
    a('v_lshl_add_u32 v7, s18, 7, v7')
    a('v_lshlrev_b32 v11, 8, v9')
    a('v_and_b32 v10, 16, %s' % l)
    a('v_lshlrev_b32 v10, 13, v10')
    a('v_lshl_add_u32 v10, v9, 9, v10')
    a('v_and_b32 v12, 15, %s' % l)
    a('v_lshl_add_u32 v10, v12, 4, v10')
    a('v_lshlrev_b32 v9, 4, v9')
    a('v_lshl_add_u32 v9, s18, 7, v9')
    a('s_mov_b32 s36, -1')
    a('s_mov_b32 s37, 0')
    a('s_mul_i32 s44, s20, 3')
    a('s_mov_b32 s24, 0')
    for i in range(48):
        a('v_mov_b32 v%d, 0' % (ACC + i))
    a('s_waitcnt lgkmcnt(0)')
    reset_handoffs(a, opt)
    stamp(a, opt, 2)
    a('s_barrier')
    stamp(a, opt, 3)
    pre = chunk_ops()
    emit_chunk(a, [o for o in pre[pre.index(('B',)):] if o[0] in 'WA'], [], 'NNN', opt)
    a('s_cmp_eq_u32 s20, 10')
    a('s_cbranch_scc1 k1_loop_nns')
    a('s_cmp_gt_u32 s20, 10')
    a('s_cbranch_scc1 k1_loop_sss')
    mainloop(a, 'NNN', 'nnn', opt)
    a('s_cmp_eq_u32 s20, 5')
    a('s_cbranch_scc1 k1_epi_qkk')
    a('s_cmp_gt_u32 s20, 5')
    a('s_cbranch_scc1 k1_epi_kkk')
    epilogue(a, 'QQQ', 'qqq', opt)
    epilogue(a, 'QKK', 'qkk', opt)
    epilogue(a, 'KKK', 'kkk', opt)
    mainloop(a, 'NNS', 'nns', opt)
    epilogue(a, 'KKV', 'kkv', opt)
    mainloop(a, 'SSS', 'sss', opt)
    epilogue(a, 'VVV', 'vvv', opt)
    gen_dma(a, opt)
    gen_aux(a, opt)
    a.label('k1_end')
    a('s_endpgm')
```

```python
from common import *

LKV = 32768
EXCH = 20480
RED = 131072
WOL = 65536
STG = 64
BRED = STG + 57344
BCNT = 0
K2_LDS = 163840
THRESH = 40.0

SA, SB, OA, OB, CM = 16, 32, 48, 64, 80
PA, PB, QA, QB, KF, VF = 96, 104, 112, 116, 120, 124
VADDR, VL, VL16 = 132, 133, 134
MA, MB = 136, 137
T = 138
VSEL, VSA, VHA, VD, VXO = 142, 143, 144, 145, 146
X = 148
WB = 212
DD = 228
U = 232
K2_VGPR = 248


def phase(a, S, P, pre, mid1, mid2, opt):
    e = lambda i: 'v_exp_f32 v%d, v%d' % (S + i, S + i)
    c = lambda i: 'v_cvt_pk_bf16_f32 v%d, v%d, v%d' % (P + i, S + 2 * i, S + 2 * i + 1)
    sched = opt.get('sched', 0)
    if sched == 0:
        seq = pre + [e(0), e(1), e(2), e(3)] + mid1 + [e(4), e(5), c(0), e(6), e(7), c(1)] + mid2 + \
            [e(8), e(9), c(2), e(10), e(11), c(3), e(12), e(13), c(4), e(14), e(15), c(5), c(6), c(7)]
    elif sched == 1:
        seq = pre + [e(0), e(1), e(2), e(3)] + mid1 + [e(4), e(5), e(6), e(7)] + mid2 + \
            [e(i) for i in range(8, 16)] + [c(i) for i in range(8)]
    elif sched == 2:
        seq = pre + [e(0), e(1), e(2), e(3), c(0), e(4), e(5), c(1)] + mid1 + [e(6), e(7), c(2), e(8), e(9), c(3), e(10), e(11)] + mid2 + \
            [c(4), e(12), e(13), c(5), e(14), e(15), c(6), c(7)]
    if opt.get('x_nopv'):
        seq = [x for x in seq if not (x.startswith('v_mfma') and (x.split()[1].startswith('v[%d:' % OA) or x.split()[1].startswith('v[%d:' % OB)))]
    if opt.get('x_noqk'):
        seq = [x for x in seq if not (x.startswith('v_mfma') and (x.split()[1].startswith('v[%d:' % SA) or x.split()[1].startswith('v[%d:' % SB)))]
    if opt.get('x_noexp'):
        seq = [x.replace('v_exp_f32', 'v_mov_b32') for x in seq]
    if opt.get('x_rcp'):
        seq = [x.replace('v_exp_f32', 'v_rcp_f32') for x in seq]
    if opt.get('x_nocvt'):
        seq = [x for x in seq if not x.startswith('v_cvt')]
    if opt.get('x_perm'):
        seq = [('v_perm_b32 %s %s %s, s43' % (x.split()[1], x.split()[3] + ',', x.split()[2].rstrip(',')) if x.startswith('v_cvt') else x) for x in seq]
    for x in seq:
        a(x)


def mf(d, x, y, c=None):
    cc = '0' if c == 'zero' else vr(d if c is None else c, 16)
    return 'v_mfma_f32_32x32x16_bf16 %s, %s, %s, %s' % (vr(d, 16), vr(x, 4), vr(y, 4), cc)


def fast_body(a, opt, extra=None):
    for u in range(4):
        o = u * 4096
        pr = ['s_setprio %d' % (3 - u)] if opt.get('prio_tile') else []
        kread = ['ds_read_b128 %s, v%d offset:%d' % (vr(KF, 4), VADDR, o + 4096)]
        vread = ['s_mov_b64 exec, s[40:41]',
                 'ds_read_b128 %s, v%d offset:%d' % (vr(VF, 4), VADDR, o + 1024),
                 'ds_read_b128 %s, v%d offset:%d' % (vr(VF + 4, 4), VADDR, o + 1280),
                 's_mov_b64 exec, -1']
        w2, w0 = ['s_waitcnt lgkmcnt(2)'], ['s_waitcnt lgkmcnt(0)']
        if opt.get('nods'):
            kread, vread, w2, w0 = [], [], [], []
        if opt.get('noexec'):
            vread = vread[1:3]
        ex0 = extra(u, 0) if extra else []
        ex = extra(u, 1) if extra else []
        CM_ = 'zero' if opt.get('czero') else CM
        phase(a, SA, PA, pr + [mf(SB, KF, QB, CM_)] + kread + ex0, [mf(OB, VF, PB)], [mf(OB, VF + 4, PB + 4)] + vread, opt)
        phase(a, SB, PB, w2 + [mf(SA, KF, QA, CM_)] + ex, w0 + [mf(OA, VF, PA)], [mf(OA, VF + 4, PA + 4)], opt)
    a('v_add_u32 v%d, 0x4000, v%d' % (VADDR, VADDR))


def slow_body(a):
    a('s_mov_b32 s45, 0')
    a.label('k2_slow_tile')
    a('ds_read_b128 %s, v%d' % (vr(KF, 4), VADDR))
    a('s_mov_b64 exec, s[40:41]')
    a('ds_read_b128 %s, v%d offset:1024' % (vr(VF, 4), VADDR))
    a('ds_read_b128 %s, v%d offset:1280' % (vr(VF + 4, 4), VADDR))
    a('s_mov_b64 exec, -1')
    a('s_waitcnt lgkmcnt(0)')
    for (S, Q, O, P, M) in ((SA, QA, OA, PA, MA), (SB, QB, OB, PB, MB)):
        a('v_mfma_f32_32x32x16_bf16 %s, %s, %s, 0' % (vr(S, 16), vr(KF, 4), vr(Q, 4)))
        t0, t1 = 'v%d' % T, 'v%d' % (T + 1)
        a('v_max3_f32 %s, v%d, v%d, v%d' % (t0, S, S + 1, M))
        for i in range(1, 8):
            a('v_max3_f32 %s, v%d, v%d, %s' % (t0, S + 2 * i, S + 2 * i + 1, t0))
        a('v_mov_b32 %s, %s' % (t1, t0))
        a('v_permlane32_swap_b32 %s, %s' % (t0, t1))
        a('v_max_f32 %s, %s, %s' % (t0, t0, t1))
        a('v_sub_f32 %s, v%d, %s' % (t1, M, t0))
        a('v_exp_f32 %s, %s' % (t1, t1))
        a('v_mov_b32 v%d, %s' % (M, t0))
        for i in range(16):
            a('v_sub_f32 v%d, v%d, %s' % (S + i, S + i, t0))
        for i in range(16):
            a('v_mul_f32 v%d, v%d, %s' % (O + i, O + i, t1))
        for i in range(16):
            a('v_exp_f32 v%d, v%d' % (S + i, S + i))
        for i in range(8):
            a('v_cvt_pk_bf16_f32 v%d, v%d, v%d' % (P + i, S + 2 * i, S + 2 * i + 1))
        a(mf(O, VF, P))
        a(mf(O, VF + 4, P + 4))
    a('v_add_u32 v%d, 0x1000, v%d' % (VADDR, VADDR))
    a('s_add_u32 s45, s45, 1')
    a('s_cmp_lt_u32 s45, 4')
    a('s_cbranch_scc1 k2_slow_tile')
    a('s_nop 7')
    a('s_nop 7')


def silu(a, dst, src, t):
    a('v_mul_f32 %s, %s, %s' % (t, f2u(NLOG2E), src))
    a('v_exp_f32 %s, %s' % (t, t))
    a('v_add_f32 %s, 1.0, %s' % (t, t))
    a('v_rcp_f32 %s, %s' % (t, t))
    a('v_mul_f32 %s, %s, %s' % (dst, src, t))


def silu4(a, r, t):
    for i in range(4):
        a('v_mul_f32 v%d, %s, v%d' % (t + i, f2u(NLOG2E), r + i))
    for i in range(4):
        a('v_exp_f32 v%d, v%d' % (t + i, t + i))
    for i in range(4):
        a('v_add_f32 v%d, 1.0, v%d' % (t + i, t + i))
    for i in range(4):
        a('v_rcp_f32 v%d, v%d' % (t + i, t + i))
    for i in range(4):
        a('v_mul_f32 v%d, v%d, v%d' % (r + i, r + i, t + i))


def small_gemm(a, nsteps, step_off, half_off):
    def rd(s):
        for j4 in range(2):
            a('ds_read_b64_tr_b16 %s, v6 offset:%d' % (vr(WB + (s & 3) * 4 + j4 * 2, 2), STG + s * step_off + j4 * half_off))
    for s in range(min(4, nsteps)):
        rd(s)
    issued = min(4, nsteps)
    for s in range(nsteps):
        a('s_waitcnt lgkmcnt(%d)' % (2 * (issued - s - 1)))
        c = '0' if s == 0 else vr(DD, 4)
        a('v_mfma_f32_16x16x32_bf16 %s, %s, %s, %s' % (vr(DD, 4), vr(WB + (s & 3) * 4, 4), vr(X + s * 4, 4), c))
        if issued < nsteps:
            rd(issued)
            issued += 1


def sel_issue(a):
    a('s_mov_b32 s46, 0x%x' % SEL)
    a('buffer_load_dword v%d, v%d, s[4:7], s46 offen sc1' % (VSEL, VSA))


def sel_wait(a):
    lab = a.newlabel('k2_psel')
    go = a.newlabel('k2_psel_ok')
    a('s_mov_b32 s46, 0x%x' % SEL)
    a('s_mov_b32 s48, 0')
    a.label(lab)
    a('s_waitcnt vmcnt(0)')
    a('v_cmp_eq_u32 vcc, 0, v%d' % VSEL)
    a('s_cbranch_vccz %s' % go)
    a('s_sleep 4')
    a('buffer_load_dword v%d, v%d, s[4:7], s46 offen sc1' % (VSEL, VSA))
    a('s_add_u32 s48, s48, 1')
    a('s_cmp_lt_u32 s48, 0x10000')
    a('s_cbranch_scc1 %s' % lab)
    a('s_waitcnt vmcnt(0)')
    a.label(go)


def kv_dma(a, lo, hi):
    for i in range(lo, hi):
        a('s_add_u32 m0, s39, %d' % (i * 8192))
        a('s_add_u32 s42, s38, %d' % (i * 8192))
        a('buffer_load_dwordx4 v%d, s[4:7], s42 offen lds' % VL16)


def st1(a, opt, i):
    if opt.get('stamp') == 1:
        stamp(a, opt, i)


def st5(a, opt, i):
    if opt.get('stamp') == 5:
        stamp(a, opt, i)


def st3(a, opt, i):
    if opt.get('stamp') == 3:
        stamp(a, opt, i)


def st2(a, opt, i):
    if opt.get('stamp') == 2:
        stamp(a, opt, i)


_dn = [0]


def dma_next(first_only=False):
    _dn[0] += 1
    lab = 'k2_dn_%d' % _dn[0]
    pre = ['s_cmp_eq_u32 s94, 0', 's_cbranch_scc1 %s' % lab] if first_only else []
    return pre + ['s_cmp_eq_u32 s95, 0', 's_cbranch_scc1 %s' % lab, 's_mov_b32 m0, s39', 's_sub_u32 s95, s95, 1',
            'buffer_load_dwordx4 v%d, s[96:99], s38 offen lds' % VD, 's_add_u32 s39, s39, s100', 's_add_u32 s38, s38, s101',
            lab + ':']


OFR = 16
ACC = 80
WF = 112
XR, XNR, G, RD, XF = 148, 156, 164, 180, 212
TT = 228


def fin(a, opt):
    if opt.get('stamp'):
        a('s_waitcnt vmcnt(0)')
    stamp(a, opt, 9)
    stamp_rt(a, opt, 11)
    stamp_flush(a, opt, 1, 's[4:7]', 's24', 8)
    readout(a, opt, 's[4:7]', 's29')


def out_proj(a, opt):
    l = 'v%d' % VL
    a('s_cmp_ge_u32 s24, 4')
    a('s_cbranch_scc1 k2_aux')
    a('s_and_b32 s29, s24, 1')
    a('s_lshr_b32 s30, s24, 1')
    a('s_lshl_b32 s37, s27, 1')
    a('s_add_u32 s37, s37, s29')
    a('s_lshl_b32 s45, s37, 1')
    a('s_add_u32 s45, s45, s30')
    a('s_lshl_b32 s37, s45, 14')
    a('s_add_u32 s37, s37, 0x%x' % OF)
    a('v_mov_b32 v3, v%d' % VL16)
    a('s_lshl_b32 s40, s28, 11')
    a('s_or_b32 s37, s37, s40')
    a('s_mov_b32 s46, 0xffff')
    a('s_mov_b32 s48, 0')

    a('v_lshlrev_b32 v4, 10, %s' % l)
    a('v_xor_b32 v4, s37, v4')
    a('s_mov_b32 s47, 0x%x' % KEY)
    a('v_mov_b32 v5, 0')

    def poll():
        a('s_mov_b64 exec, 0xffff')
        a('buffer_load_dword v2, v4, s[4:7], 0 offen offset:1020 sc1')
        a('s_mov_b64 exec, -1')
    poll()
    a('v_lshrrev_b32 v9, 5, %s' % l)
    a('v_bfe_u32 v10, %s, 2, 2' % l)
    a('v_lshlrev_b32 v11, 9, v9')
    a('v_lshl_add_u32 v11, v10, 7, v11')
    a('v_and_b32 v12, 8, %s' % l)
    a('v_lshl_add_u32 v11, v12, 3, v11')
    a('v_and_b32 v12, 16, %s' % l)
    a('v_lshl_add_u32 v11, v12, 1, v11')
    a('v_and_b32 v12, 3, %s' % l)
    a('v_lshl_add_u32 v11, v12, 3, v11')
    a('s_lshl_b32 s41, s30, 15')
    a('s_lshl_b32 s42, s28, 12')
    a('s_or_b32 s41, s41, s42')
    a('s_add_u32 s41, s41, %d' % WOL)
    a('v_add_u32 v11, s41, v11')
    a('v_and_b32 v13, 31, %s' % l)
    a('v_lshl_add_u32 v13, s29, 5, v13')
    a('v_and_b32 v12, 7, %s' % l)
    a('v_xor_b32 v12, v12, v9')
    a('v_lshlrev_b32 v13, 8, v13')
    a('v_lshl_add_u32 v13, v12, 4, v13')
    a('s_lshl_b32 s43, s30, 14')
    a('s_add_u32 s43, s43, %d' % RED)
    a('v_add_u32 v13, s43, v13')

    for i in range(16):
        a('v_xor_b32 v6, %d, v11' % (i << 11))
        a('v_xor_b32 v7, %d, v11' % ((i << 11) | 64))
        for ct in range(2):
            for j4 in range(2):
                a('ds_read_b64_tr_b16 %s, v%d offset:%d' % (vr(WF + i * 8 + ct * 4 + j4 * 2, 2), 6 + ct, j4 * 1024))
        a('v_mov_b64 %s, 0' % vr(ACC + 2 * i, 2))
    a('s_waitcnt lgkmcnt(0)')
    st1(a, opt, 4)
    a.label('k2_round')
    a('s_waitcnt vmcnt(0)')
    a('v_cmp_ne_u32 vcc, -1, v2')
    a('s_add_u32 s48, s48, 1')
    a('s_cmp_lt_u32 s48, 0x40000')
    a('s_cbranch_scc0 k2_fok')
    a('s_and_b32 s45, vcc_lo, s46')
    a('s_cbranch_scc1 k2_fetch')
    if opt.get('fsleep', 1):
        a('s_sleep %d' % opt.get('fsleep', 1))
    poll()
    a('s_branch k2_round')
    a.label('k2_fetch')
    if opt.get('stamp') == 5:
        a('s_cmp_lg_u32 s46, 0xffff')
        a('s_cbranch_scc1 k2_nf')
        stamp(a, opt, 3)
        a('s_bcnt1_i32_b32 s76, s45')
        a('s_add_u32 s76, s76, s64')
        a.label('k2_nf')
        stamp(a, opt, 4)
    for i in range(16):
        a('s_xor_b32 s41, s37, %d' % (i << 10))
        a('s_bitcmp1_b32 s45, %d' % i)
        a('s_cselect_b64 exec, -1, 1')
        a('s_cselect_b32 s41, s41, s47')
        a('buffer_load_dwordx4 %s, v3, s[4:7], s41 offen %s' % (vr(OFR + 4 * i, 4), opt.get('ofl', '')))
    poll()
    for i in range(16):
        nxt = 'k2_f%d' % i
        r = OFR + 4 * i
        a('s_bitcmp1_b32 s45, %d' % i)
        a('s_cbranch_scc0 %s' % nxt)
        a('s_waitcnt vmcnt(%d)' % (16 - i))
        for ct in range(2):
            a('v_mfma_f32_32x32x16_bf16 %s, %s, %s, %s' % (vr(ACC + 16 * ct, 16), vr(WF + i * 8 + ct * 4, 4), vr(r, 4), vr(ACC + 16 * ct, 16)))
            a('v_max3_u32 v5, v%d, v%d, v5' % (r + 2 * ct, r + 2 * ct + 1))
        a.label(nxt)
    a('s_andn2_b32 s46, s46, s45')
    a('s_cbranch_scc1 k2_round')
    a('v_cmp_eq_u32 vcc, -1, v5')
    a('s_cbranch_vccz k2_fok')
    a('buffer_inv sc1')
    a('s_mov_b32 s46, 0xffff')
    a('v_mov_b32 v5, 0')
    a('s_nop 7')
    for i in range(16):
        a('v_mov_b64 %s, 0' % vr(ACC + 2 * i, 2))
    a('s_branch k2_round')
    a.label('k2_fok')
    st5(a, opt, 5)
    if opt.get('stamp') == 5:
        a('s_add_u32 s78, s64, s48')
    for q in range(1, 4):
        a('v_xor_b32 v%d, %d, v13' % (5 + q, q << 5))
    a('s_nop 7')
    for ct in range(2):
        for q in range(4):
            a('ds_write_b128 v%d, %s offset:%d' % (13 if q == 0 else 5 + q, vr(ACC + 16 * ct + 4 * q, 4), ct * 128))
    a('s_waitcnt lgkmcnt(0)')
    st1(a, opt, 6)
    a('s_barrier')
    fin(a, opt)
    a('s_endpgm')
    a.label('k2_aux')
    a('s_mov_b64 s[8:9], s[92:93]')
    a('s_mov_b32 s10, 0x200000')
    a('s_mov_b64 s[12:13], s[88:89]')
    a('s_mov_b32 s14, 0x200000')
    a('s_lshl_b32 s50, s27, 6')
    a('s_lshl_b32 s51, s29, 4')
    a('s_add_u32 s50, s50, s51')
    a('s_lshl_b32 s51, s50, 10')
    a('s_lshl_b32 s52, s28, 7')
    a('s_add_u32 s51, s51, s52')
    a('s_add_u32 s52, s51, 8192')
    a('s_add_u32 s53, s51, 0x%x' % XN)
    a('s_add_u32 s54, s52, 0x%x' % XN)
    sel_issue(a)
    a('buffer_load_dwordx4 %s, v%d, s[4:7], s53 offen' % (vr(XNR, 4), VXO))
    a('buffer_load_dwordx4 %s, v%d, s[4:7], s54 offen' % (vr(XNR + 4, 4), VXO))
    a('buffer_load_dwordx4 %s, v%d, s[8:11], s51 offen' % (vr(XR, 4), VXO))
    a('buffer_load_dwordx4 %s, v%d, s[8:11], s52 offen' % (vr(XR + 4, 4), VXO))
    sel_wait(a)
    a('v_lshrrev_b32 v2, 3, %s' % l)
    a('v_and_b32 v3, 7, %s' % l)
    a('v_lshl_add_u32 v14, s29, 4, v2')
    a('v_lshlrev_b32 v14, 8, v14')
    a('v_lshlrev_b32 v13, 1, v3')
    a('v_xor_b32 v13, v13, v2')
    a('v_lshl_add_u32 v14, v13, 4, v14')
    a('v_add_u32 v14, %d, v14' % RED)
    a('v_xor_b32 v13, 16, v14')
    for k in range(8):
        a('v_readlane_b32 s%d, v%d, %d' % (56 + k, VSEL, k))
    a('s_sub_u32 s43, 0x7ff, s50')
    a('v_sub_u32 v15, s43, v2')
    a('s_mov_b64 s[44:45], 0')
    a('s_mov_b64 s[46:47], 0')
    a('v_lshlrev_b32 v%d, 5, v3' % TT)
    a('v_lshlrev_b32 v%d, 5, v3' % (TT + 1))
    for k in range(8):
        a('s_and_b32 s48, s%d, 0x7ff' % (56 + k))
        a('s_add_u32 s49, s48, 8')
        a('v_cmp_eq_u32 s[92:93], s48, v15')
        a('v_cmp_eq_u32 vcc, s49, v15')
        a('v_add_u32 v%d, %d, v%d' % (TT + 2, k * 2048, TT))
        a('v_add_u32 v%d, %d, v%d' % (TT + 3, k * 2048, TT + 1))
        a('s_or_b64 s[44:45], s[44:45], s[92:93]')
        a('s_or_b64 s[46:47], s[46:47], vcc')
        a('v_cndmask_b32 v%d, v%d, v%d, s[92:93]' % (TT, TT, TT + 2))
        a('v_cndmask_b32 v%d, v%d, v%d, vcc' % (TT + 1, TT + 1, TT + 3))
    for i in range(8):
        a('v_lshlrev_b32 v%d, 16, v%d' % (G + 2 * i, XNR + i))
        a('v_and_b32 v%d, 0xffff0000, v%d' % (G + 2 * i + 1, XNR + i))
    for fmt in ('v_mul_f32 v{t}, %s, v{g}' % f2u(NLOG2E), 'v_exp_f32 v{t}, v{t}', 'v_add_f32 v{t}, 1.0, v{t}', 'v_rcp_f32 v{t}, v{t}',
                'v_mul_f32 v{g}, v{g}, v{t}'):
        for i in range(16):
            a(fmt.format(t=RD + i, g=G + i))
    for i in range(8):
        a('v_lshlrev_b32 v%d, 16, v%d' % (XF + 2 * i, XR + i))
        a('v_and_b32 v%d, 0xffff0000, v%d' % (XF + 2 * i + 1, XR + i))
    a('s_lshl_b32 s48, s28, 8')
    a('s_add_u32 s48, s48, 0x%x' % GSEL)
    for p in range(2):
        lab, again = a.newlabel('k2_nosel'), a.newlabel('k2_gpoll')
        m = 's[44:45]' if p == 0 else 's[46:47]'
        a('s_cmp_eq_u64 %s, 0' % m)
        a('s_cbranch_scc1 %s' % lab)
        a('s_mov_b64 exec, %s' % m)
        a('s_mov_b32 s49, 0')
        a.label(again)
        a('buffer_load_dwordx4 %s, v%d, s[4:7], s48 offen sc1' % (vr(G + 8 * p, 4), TT + p))
        a('buffer_load_dwordx4 %s, v%d, s[4:7], s48 offen offset:16 sc1' % (vr(G + 8 * p + 4, 4), TT + p))
        a('s_add_u32 s49, s49, 1')
        a('s_waitcnt vmcnt(0)')
        a('v_max3_u32 v4, v%d, v%d, v%d' % (G + 8 * p, G + 8 * p + 1, G + 8 * p + 2))
        a('v_max3_u32 v4, v%d, v%d, v4' % (G + 8 * p + 3, G + 8 * p + 4))
        a('v_max3_u32 v4, v%d, v%d, v4' % (G + 8 * p + 5, G + 8 * p + 6))
        a('v_max_u32 v4, v%d, v4' % (G + 8 * p + 7))
        a('v_cmp_eq_u32 vcc, -1, v4')
        a('s_cmp_lt_u32 s49, 0x40000')
        a('s_cselect_b64 vcc, vcc, 0')
        a('s_cbranch_vccnz %s' % again)
        a('s_mov_b64 exec, -1')
        a.label(lab)
    st1(a, opt, 4)
    a('s_barrier')
    st1(a, opt, 6)
    for p in range(2):
        for kh in range(2):
            for h in range(2):
                a('ds_read_b128 %s, v%d offset:%d' % (vr(RD + 16 * p + 8 * kh + 4 * h, 4), 14 - h, p * 2048 + kh * 16384))
    for p in range(2):
        a('s_waitcnt lgkmcnt(%d)' % (4 - 4 * p))
        for i in range(8):
            a('v_add_f32 v%d, v%d, v%d' % (RD + 16 * p + i, RD + 16 * p + i, RD + 16 * p + 8 + i))
        for i in range(8):
            a('v_fmac_f32 v%d, v%d, v%d' % (XF + 8 * p + i, RD + 16 * p + i, G + 8 * p + i))
        for i in range(4):
            a('v_cvt_pk_bf16_f32 v%d, v%d, v%d' % (TT + 4 * p + i, XF + 8 * p + 2 * i, XF + 8 * p + 2 * i + 1))
        a('buffer_store_dwordx4 %s, v%d, s[12:15], %s offen %s' % (vr(TT + 4 * p, 4), VXO, 's51' if p == 0 else 's52', opt.get('k3st', '')))
    fin(a, opt)


def gen_k2(a, opt):
    l = 'v%d' % VL
    opt = dict(opt)
    opt.setdefault('prio_tile', 1)
    a('s_cmp_ge_u32 s2, 256')
    a('s_cbranch_scc1 k2_end')
    stamp(a, opt, 0)
    stamp_rt(a, opt, 10)
    a('s_load_dwordx2 s[4:5], s[0:1], 80')
    a('s_load_dwordx4 s[8:11], s[0:1], 40')
    a('s_load_dwordx2 s[16:17], s[0:1], 56')
    a('s_load_dwordx2 s[20:21], s[0:1], 16')
    a('s_load_dwordx2 s[92:93], s[0:1], 0')
    a('s_load_dwordx2 s[88:89], s[0:1], 64')
    a('v_lshrrev_b32 v1, 6, v0')
    a('v_and_b32 %s, 63, v0' % l)
    a('v_readfirstlane_b32 s24, v1')
    a('v_lshlrev_b32 v%d, 4, %s' % (VL16, l))
    a('s_mov_b32 s6, 0x%x' % WS_USED)
    a('s_mov_b32 s7, 0x20000')
    a('s_and_b32 s25, s2, 7')
    a('s_lshr_b32 s26, s2, 3')
    a('s_and_b32 s27, s26, 3')
    a('s_lshl_b32 s28, s25, 2')
    a('s_add_u32 s27, s27, s28')
    a('s_lshr_b32 s28, s26, 2')
    a('s_and_b32 s29, s24, 3')
    a('s_lshr_b32 s30, s24, 2')
    a('s_lshl_b32 s31, s28, 3')
    a('s_lshl_b32 s32, s29, 1')
    a('s_add_u32 s31, s31, s32')
    a('s_add_u32 s31, s31, s30')
    a('s_xor_b32 s32, s31, 1')
    a('s_lshl_b32 s33, s27, 16')
    a('s_lshl_b32 s34, s31, 10')
    a('s_add_u32 s34, s34, s33')
    a('s_lshl_b32 s35, s32, 10')
    a('s_add_u32 s35, s35, s33')
    a('s_lshl_b32 s36, s27, 8')
    a('s_add_u32 s36, s36, 0x%x' % KNORM)
    a('v_lshlrev_b32 v2, 2, %s' % l)
    a('s_lshl_b32 s37, s27, 17')
    a('s_lshl_b32 s39, s24, 10')
    a('s_add_u32 s38, s37, s39')
    a('s_add_u32 s38, s38, 0x%x' % KV)
    a('s_add_u32 s39, s39, %d' % LKV)
    a('s_waitcnt lgkmcnt(0)')
    a('buffer_load_dword v3, v2, s[4:7], s36 offen')
    a('buffer_load_dwordx4 %s, v%d, s[4:7], s34 offen' % (vr(QA, 4), VL16))
    a('buffer_load_dwordx4 %s, v%d, s[4:7], s35 offen' % (vr(QB, 4), VL16))
    kv_dma(a, 0, 3)
    a('s_cmp_eq_u32 s24, 2')
    a('s_cbranch_scc0 k2_nokeys')
    a('s_lshl_b32 s45, s2, 5')
    a('s_add_u32 s45, s45, 0x%x' % KEY)
    a('s_add_u32 s52, s4, s45')
    a('s_addc_u32 s53, s5, 0')
    a('s_load_dwordx8 s[56:63], s[52:53], 0')
    a.label('k2_nokeys')
    a('s_mov_b32 s12, s10')
    a('s_mov_b32 s13, s11')
    a('s_mov_b32 s10, %d' % (512 * 3584))
    a('s_mov_b32 s11, 0x20000')
    a('s_mov_b32 s14, %d' % (512 * 3584))
    a('s_mov_b32 s15, 0x20000')
    a('s_mov_b32 s18, %d' % (1792 * 1024))
    a('s_mov_b32 s19, 0x20000')
    a('s_mov_b32 s22, 0x80000')
    a('s_mov_b32 s23, 0x20000')
    a('s_mov_b32 s40, 0xffff')
    a('s_mov_b32 s41, 0xffff')
    a('s_lshl_b32 s42, s30, 11')
    a('s_add_u32 s42, s42, %d' % LKV)
    a('v_add_u32 v%d, s42, v%d' % (VADDR, VL16))
    for i in range(0, 16, 2):
        a('v_mov_b64 %s, 0' % vr(OA + i, 2))
        a('v_mov_b64 %s, 0' % vr(OB + i, 2))
    a('ds_write_b32 v%d, v%d offset:%d' % (OA, OA, BCNT))
    a('v_and_b32 v4, 27, %s' % l)
    a('v_cmp_eq_u32 vcc, 16, v4')
    a('v_mov_b32 v4, 0x%x' % ONES_BF)
    a('v_and_b32 v%d, 7, %s' % (VSA, l))
    a('v_cndmask_b32 v%d, 0, v4, vcc' % VF)
    a('v_cndmask_b32 v%d, 0, v4, vcc' % (VF + 1))
    for i in range(0, 8, 2):
        a('v_mov_b64 %s, 0' % vr(PB + i, 2))
        if i:
            a('v_mov_b64 %s, %s' % (vr(VF + i, 2), vr(VF, 2)))
    a('v_lshlrev_b32 v%d, 2, v%d' % (VSA, VSA))
    a('v_mov_b32 v%d, 0' % VHA)
    a('v_mov_b32 v%d, 0' % VXO)
    a('v_mov_b32 v%d, %s' % (MA, f2u(-3.0e38)))
    a('v_mov_b32 v%d, %s' % (MB, f2u(-3.0e38)))
    na, nb, t0 = 'v4', 'v5', 'v6'
    a('v_mov_b32 %s, 0' % na)
    a('v_mov_b32 %s, 0' % nb)
    st1(a, opt, 1)
    a('s_waitcnt vmcnt(5)')
    wave_reduce(a, ['v3'], 'v_max_f32')
    a('v_readlane_b32 s42, v3, 63')
    a('s_waitcnt vmcnt(3)')
    st1(a, opt, 2)
    for i in range(4):
        a('v_dot2c_f32_bf16 %s, v%d, v%d' % (na, QA + i, QA + i))
        a('v_dot2c_f32_bf16 %s, v%d, v%d' % (nb, QB + i, QB + i))
    a('v_permlane32_swap_b32 %s, %s' % (na, nb))
    a('v_add_f32 %s, %s, %s' % (na, na, nb))
    a('v_mov_b32 %s, %s' % (nb, na))
    a('v_permlane32_swap_b32 %s, %s' % (na, nb))
    a('v_max_f32 %s, %s, %s' % (na, na, nb))
    a('v_mul_f32 %s, s42, %s' % (na, na))
    a('v_sqrt_f32 %s, %s' % (na, na))
    a('v_mul_f32 v%d, %s, %s' % (CM, f2u(-1.02), na))
    a('v_mul_f32 v%d, %s, %s' % (CM + 1, f2u(-1.02), na))
    a('v_cmp_nle_f32 vcc, %s, v%d' % (f2u(-THRESH), CM))
    for i in range(2, 16, 2):
        a('v_mov_b64 %s, %s' % (vr(CM + i, 2), vr(CM, 2)))
    a('s_cmp_lg_u64 vcc, 0')
    a('s_cselect_b32 s43, 1, 0')
    if opt.get('force_slow'):
        a('s_mov_b32 s43, 1')
    a('s_waitcnt vmcnt(0) lgkmcnt(0)')
    a('s_barrier')
    st1(a, opt, 3)
    a('ds_read_b128 %s, v%d' % (vr(KF, 4), VADDR))
    a('s_cmp_eq_u32 s24, 2')
    a('s_cbranch_scc0 k2_nokeys2')
    for i in range(8):
        a('s_mov_b32 s45, 0x%x' % (KEY + i * 1024))
        a('buffer_load_dwordx4 %s, v%d, s[4:7], s45 offen' % (vr(X + 4 * i, 4), VL16))
    a.label('k2_nokeys2')
    a('s_add_u32 s38, s38, %d' % (3 * 8192))
    a('s_add_u32 s39, s39, %d' % (3 * 8192))
    a('s_mov_b64 s[96:97], s[4:5]')
    a('s_mov_b32 s98, s6')
    a('s_mov_b32 s99, 0x20000')
    a('s_movk_i32 s100, 8192')
    a('s_movk_i32 s101, 8192')
    a('s_mov_b32 s95, 13')
    a('s_mov_b32 s94, 1')
    a('v_mov_b32 v%d, v%d' % (VD, VL16))
    a('s_mov_b32 s44, 0')
    a('s_waitcnt lgkmcnt(0)')
    a(mf(SA, KF, QA, CM))
    a('s_nop 7')
    a('s_branch k2_body')
    a.label('k2_loop')
    a('s_setprio 3')
    if opt.get('stamp') == 4:
        for it in range(1, 8):
            lab = a.newlabel('k2_st')
            a('s_cmp_lg_u32 s44, %d' % it)
            a('s_cbranch_scc1 %s' % lab)
            stamp(a, opt, it)
            a.label(lab)
    for h in (1, 2, 3, 6, 7):
        a('s_cmp_eq_u32 s44, %d' % h)
        a('s_cbranch_scc1 k2_hook%d' % h)
    a('s_cmp_ge_u32 s24, 4')
    a('s_cbranch_scc1 k2_body')
    for h in (4,):
        a('s_cmp_eq_u32 s44, %d' % h)
        a('s_cbranch_scc1 k2_hook%d' % h)
    a.label('k2_body')
    a('s_cmp_lg_u32 s43, 0')
    a('s_cbranch_scc1 k2_slow')
    a('s_cmp_lg_u32 s95, 0')
    a('s_cbranch_scc1 k2_body_dma')
    a('.p2align 3')
    fast_body(a, opt)
    a.label('k2_next')
    a('s_add_u32 s44, s44, 1')
    a('s_cmp_lt_u32 s44, 8')
    a('s_cbranch_scc1 k2_loop')
    if opt.get('stamp') not in (4, 5):
        stamp(a, opt, 7)
    a('s_cmp_lg_u32 s43, 0')
    a('s_cbranch_scc1 k2_nopv')
    a(mf(OB, VF, PB))
    a(mf(OB, VF + 4, PB + 4))
    a.label('k2_nopv')
    stamp(a, opt, 8)
    a('s_mul_i32 s45, s24, 2560')
    a('s_add_u32 s45, s45, %d' % EXCH)
    a('s_xor_b32 s46, s24, 4')
    a('s_mul_i32 s46, s46, 2560')
    a('s_add_u32 s46, s46, %d' % EXCH)
    a('v_add_u32 v4, s45, v%d' % VL16)
    a('v_add_u32 v5, s46, v%d' % VL16)
    a('v_lshl_add_u32 v6, %s, 3, s45' % l)
    a('v_lshl_add_u32 v7, %s, 3, s46' % l)
    a('s_lshl_b32 s47, s31, 15')
    a('s_lshl_b32 s48, s27, 10')
    a('s_add_u32 s47, s47, s48')
    a('s_add_u32 s47, s47, 0x%x' % OF)
    a('s_cmp_lt_u32 s26, 28')
    a('s_cbranch_scc1 k2_xl')
    a('v_mov_b32 v8, 0')
    a.label('k2_bwait')
    a('ds_read_b32 v9, v8 offset:%d' % BCNT)
    a('s_waitcnt lgkmcnt(0)')
    a('v_readfirstlane_b32 s48, v9')
    a('s_cmp_lt_u32 s48, 4')
    a('s_cbranch_scc1 k2_bwait')
    a.label('k2_xl')
    a('v_mov_b32 v%d, v%d' % (OB + 9, MB))
    a('ds_write_b128 v4, %s' % vr(OB, 4))
    a('ds_write_b128 v4, %s offset:1024' % vr(OB + 4, 4))
    a('ds_write_b64 v6, %s offset:2048' % vr(OB + 8, 2))
    a('s_waitcnt vmcnt(0) lgkmcnt(0)')
    a('s_barrier')
    a('ds_read_b128 %s, v5' % vr(SA, 4))
    a('ds_read_b128 %s, v5 offset:1024' % vr(SA + 4, 4))
    a('ds_read_b64 %s, v7 offset:2048' % vr(SA + 8, 2))
    a('s_waitcnt lgkmcnt(0)')
    a('s_cmp_lg_u32 s43, 0')
    a('s_cbranch_scc1 k2_merge_slow')
    a.label('k2_merged')
    a('v_add_f32 v%d, v%d, v%d' % (OA + 8, OA + 8, SA + 8))
    a('v_rcp_f32 v%d, v%d' % (OA + 8, OA + 8))
    for i in range(8):
        a('v_add_f32 v%d, v%d, v%d' % (OA + i, OA + i, SA + i))
    for i in range(8):
        a('v_mul_f32 v%d, v%d, v%d' % (OA + i, OA + i, OA + 8))
    for i in range(4):
        a('v_cvt_pk_bf16_f32 v%d, v%d, v%d' % (PA + i, OA + 2 * i, OA + 2 * i + 1))
    for i in range(4):
        a('v_min_u32 v%d, -2, v%d' % (PA + i, PA + i))
    a('buffer_store_dwordx4 %s, v%d, s[4:7], s47 offen sc1' % (vr(PA, 4), VL16))
    st1(a, opt, 5)
    st5(a, opt, 1)
    if opt.get('stamp') == 5:
        a('s_waitcnt vmcnt(0)')
    st5(a, opt, 2)
    out_proj(a, opt)
    a.label('k2_end')
    a('s_endpgm')
    a.label('k2_merge_slow')
    a('v_max_f32 v6, v%d, v%d' % (MA, SA + 9))
    a('v_sub_f32 v7, v%d, v6' % MA)
    a('v_sub_f32 v8, v%d, v6' % (SA + 9))
    a('v_exp_f32 v7, v7')
    a('v_exp_f32 v8, v8')
    for i in range(9):
        a('v_mul_f32 v%d, v%d, v7' % (OA + i, OA + i))
        a('v_mul_f32 v%d, v%d, v8' % (SA + i, SA + i))
    a('s_branch k2_merged')
    a.label('k2_slow')
    for k in range(14):
        for x in dma_next():
            a(x)
    slow_body(a)
    a('s_branch k2_next')
    a('.p2align 3')
    a.label('k2_body_dma')
    fast_body(a, opt, lambda u, ph: dma_next() + dma_next(True) if (u, ph) != (3, 1) else [])
    a('s_branch k2_next')
    a.label('k2_hook1')
    st1(a, opt, 4)
    a('s_waitcnt vmcnt(0)')
    a('s_barrier')
    a('s_cmp_eq_u32 s24, 2')
    a('s_cbranch_scc0 k2_body')
    a('v_max3_u32 v4, v%d, v%d, v%d' % (X, X + 1, X + 2))
    a('v_max3_u32 v5, v%d, v%d, v%d' % (X + 3, X + 4, X + 5))
    for i in range(6, 30, 4):
        a('v_max3_u32 v4, v%d, v%d, v4' % (X + i, X + i + 1))
        a('v_max3_u32 v5, v%d, v%d, v5' % (X + i + 2, X + i + 3))
    a('v_max3_u32 v4, v%d, v%d, v4' % (X + 30, X + 31))
    a('v_max_u32 v4, v4, v5')
    a('s_max_u32 s45, s56, s57')
    for i in range(58, 64):
        a('s_max_u32 s45, s45, s%d' % i)
    a('v_cmp_lt_u32 vcc, s45, v4')
    a('s_bcnt1_i32_b64 s46, vcc')
    a('s_cmp_ge_u32 s46, 8')
    a('s_cbranch_scc1 k2_body')
    a('s_mov_b32 s47, 0')
    a.label('k2_rank_loop')
    a('v_cmp_lt_u32 vcc, s56, v4')
    a('s_bcnt1_i32_b64 s46, vcc')
    a('s_cmp_ge_u32 s46, 8')
    a('s_cbranch_scc1 k2_rank_next')
    a('s_mov_b32 s46, 0')
    for i in range(32):
        a('v_cmp_lt_u32 vcc, s56, v%d' % (X + i))
        a('s_bcnt1_i32_b64 s45, vcc')
        a('s_add_u32 s46, s46, s45')
    a('s_cmp_ge_u32 s46, 8')
    a('s_cbranch_scc1 k2_rank_next')
    a('s_lshl_b32 s46, s46, 2')
    a('s_add_u32 s46, s46, 0x%x' % SEL)
    a('v_mov_b32 v5, s56')
    a('v_mov_b32 v6, 0')
    a('s_mov_b64 exec, 1')
    a('buffer_store_dword v5, v6, s[4:7], s46 offen sc1')
    a('s_mov_b64 exec, -1')
    a.label('k2_rank_next')
    for i in range(56, 63):
        a('s_mov_b32 s%d, s%d' % (i, i + 1))
    a('s_add_u32 s47, s47, 1')
    a('s_cmp_lt_u32 s47, 8')
    a('s_cbranch_scc1 k2_rank_loop')
    a('s_branch k2_body')
    a.label('k2_hook2')
    a('s_cmp_ge_u32 s24, 4')
    a('s_cbranch_scc1 k2_body')
    a('s_cmp_lt_u32 s26, 28')
    a('s_cbranch_scc0 k2_body')
    sel_issue(a)
    a('s_mul_i32 s45, s25, 28')
    a('s_add_u32 s45, s45, s26')
    a('s_lshl_b32 s45, s45, 4')
    a('s_mul_i32 s46, s24, %d' % (128 * 3584))
    a('s_add_u32 s38, s45, s46')
    a('s_movk_i32 s46, 3584')
    a('v_mul_u32_u24 v%d, s46, %s' % (VD, l))
    a('s_lshl_b32 s39, s24, 11')
    a('s_add_u32 s39, s39, %d' % STG)
    a('s_mov_b64 s[96:97], s[8:9]')
    a('s_mov_b32 s98, s10')
    a('s_movk_i32 s100, 1024')
    a('s_mov_b32 s101, %d' % (64 * 3584))
    a('s_mov_b32 s95, 2')
    a('s_mov_b32 s94, 0')
    a('s_branch k2_body')
    a.label('k2_hook3')
    st3(a, opt, 1)
    st1(a, opt, 6)
    a('s_cmp_lt_u32 s26, 28')
    a('s_cbranch_scc0 k2_h3_B')
    a('s_cmp_lt_u32 s24, 4')
    a('s_cbranch_scc0 k2_h3_pf')
    st3(a, opt, 2)
    sel_wait(a)
    st3(a, opt, 3)
    if opt.get('stamp') == 3:
        a('s_add_u32 s76, s64, s48')
    a('v_and_b32 v4, 0x7ff, v%d' % VSEL)
    a('v_sub_u32 v4, 0x7ff, v4')
    a('v_and_b32 v6, 48, %s' % l)
    a('v_lshl_add_u32 v4, v4, 10, v6')
    a('s_lshl_b32 s46, s24, 8')
    a('s_add_u32 s46, s46, 0x%x' % XN)
    for s in range(4):
        a('buffer_load_dwordx4 %s, v4, s[4:7], s46 offen offset:%d' % (vr(X + 4 * s, 4), s * 64))
    st3(a, opt, 4)
    a('s_sub_u32 s38, s38, %d' % (128 * 3584))
    a('s_add_u32 s39, s39, %d' % (8256 - 2048))
    a('s_mov_b64 s[96:97], s[12:13]')
    a('s_mov_b32 s95, 2')
    a('s_branch k2_body')
    a.label('k2_h3_B')
    a('s_barrier')
    a('s_cmp_lt_u32 s24, 4')
    a('s_cbranch_scc0 k2_h3_pf')
    a('s_lshl_b32 s45, s25, 2')
    a('s_add_u32 s45, s45, s26')
    a('s_sub_u32 s45, s45, 28')
    a('s_lshl_b32 s45, s45, 5')
    a('s_mul_i32 s46, s24, %d' % (448 * 1024))
    a('s_add_u32 s38, s45, s46')
    a('s_mul_i32 s39, s24, 14336')
    a('s_add_u32 s39, s39, %d' % STG)
    a('v_lshrrev_b32 v4, 1, %s' % l)
    a('v_and_b32 v5, 1, %s' % l)
    a('v_lshlrev_b32 v5, 4, v5')
    a('v_lshl_add_u32 v%d, v4, 10, v5' % VD)
    a('s_mov_b64 s[96:97], s[16:17]')
    a('s_mov_b32 s98, s18')
    a('s_movk_i32 s100, 1024')
    a('s_mov_b32 s101, 32768')
    a('s_mov_b32 s95, 14')
    a('s_mov_b32 s94, 0')
    a('s_branch k2_body')

    a.label('k2_h3_pf')
    a('v_lshlrev_b32 v4, 7, %s' % l)
    a('s_cmp_lt_u32 s24, 6')
    a('s_cbranch_scc0 k2_h3_pfx')
    a('s_lshl_b32 s45, s26, 1')
    a('s_add_u32 s45, s45, s29')
    a('s_lshl_b32 s45, s45, 13')
    a('buffer_load_dword v15, v4, s[20:23], s45 offen')
    a('s_branch k2_body')
    a.label('k2_h3_pfx')
    a('s_lshl_b32 s45, s25, 5')
    a('s_add_u32 s45, s45, s26')
    a('s_lshl_b32 s45, s45, 13')
    a('s_cmp_eq_u32 s24, 6')
    a('s_cbranch_scc0 k2_h3_pfxn')
    a('v_add_u32 v4, s45, v4')
    a('global_load_dword v15, v4, s[92:93]')
    a('s_branch k2_body')
    a.label('k2_h3_pfxn')
    a('s_add_u32 s45, s45, 0x%x' % XN)
    a('buffer_load_dword v15, v4, s[4:7], s45 offen')
    a('s_branch k2_body')

    def arrive(notlast):
        a('v_lshl_add_u32 v6, s24, 10, v%d' % VL16)
        a('v_mov_b32 v7, 0')
        a('v_mov_b32 v8, 1')
        a('s_mov_b32 exec_lo, 0x00ff00ff')
        a('s_mov_b32 exec_hi, 0x00ff00ff')
        a('ds_write_b128 v6, %s offset:%d' % (vr(DD, 4), BRED))
        a('s_mov_b64 exec, 1')
        a('ds_add_rtn_u32 v8, v7, v8 offset:%d' % BCNT)
        a('s_mov_b64 exec, -1')
        a('s_waitcnt lgkmcnt(0)')
        a('v_readfirstlane_b32 s46, v8')
        a('s_cmp_eq_u32 s46, 3')
        a('s_cbranch_scc0 %s' % notlast)
        for w in range(4):
            a('ds_read_b128 %s, v%d offset:%d' % (vr(X + 4 * w, 4), VL16, BRED + w * 1024))

    def sum4():
        a('s_waitcnt lgkmcnt(0)')
        for i in range(4):
            a('v_add_f32 v%d, v%d, v%d' % (X + i, X + i, X + 4 + i))
            a('v_add_f32 v%d, v%d, v%d' % (X + 8 + i, X + 8 + i, X + 12 + i))
        for i in range(4):
            a('v_add_f32 v%d, v%d, v%d' % (X + i, X + i, X + 8 + i))

    def round4(r):
        for (r0, r1) in ((r, r + 1), (r + 2, r + 3)):
            a('v_cvt_pk_bf16_f32 v%d, v%d, v%d' % (r1, r0, r1))
        for (r0, r1) in ((r, r + 1), (r + 2, r + 3)):
            a('v_lshlrev_b32 v%d, 16, v%d' % (r0, r1))
            a('v_and_b32 v%d, 0xffff0000, v%d' % (r1, r1))
    a.label('k2_hook4')
    st3(a, opt, 5)
    st2(a, opt, 1)
    a('s_cmp_lt_u32 s26, 28')
    a('s_cbranch_scc1 k2_h4_A')
    sel_issue(a)
    a('s_branch k2_body')
    a.label('k2_h4_A')
    a('v_lshrrev_b32 v5, 4, %s' % l)
    a('v_bfe_u32 v6, %s, 2, 2' % l)
    a('v_lshl_add_u32 v6, v5, 3, v6')
    a('v_lshlrev_b32 v6, 4, v6')
    a('v_and_b32 v7, 1, %s' % l)
    a('v_lshl_add_u32 v6, v7, 3, v6')
    a('v_bfe_u32 v7, %s, 1, 1' % l)
    a('s_movk_i32 s47, 8256')
    a('v_mad_u32_u24 v6, v7, s47, v6')
    a('v_lshl_add_u32 v6, s24, 11, v6')
    a('s_waitcnt vmcnt(0)')
    small_gemm(a, 4, 512, 64)
    arrive('k2_body')
    a('v_and_b32 v4, 7, %s' % l)
    a('s_movk_i32 s47, 3584')
    a('v_lshlrev_b32 v5, 3, v5')
    a('v_mad_u32_u24 v4, v4, s47, v5')
    a('s_mul_i32 s45, s25, 28')
    a('s_add_u32 s45, s45, s26')
    a('s_lshl_b32 s45, s45, 4')
    a('s_add_u32 s45, s45, 0x%x' % HB)
    sum4()
    round4(X)
    for i in range(4):
        a('v_mov_b32 v%d, v%d' % (U + i, X + i))
    for i in range(4):
        a('v_permlane32_swap_b32 v%d, v%d' % (X + i, U + i))
    silu4(a, X, U + 4)
    round4(X)
    for i in range(4):
        a('v_mul_f32 v%d, v%d, v%d' % (X + i, X + i, U + i))
    a('v_cvt_pk_bf16_f32 v%d, v%d, v%d' % (U, X, X + 1))
    a('v_cvt_pk_bf16_f32 v%d, v%d, v%d' % (U + 1, X + 2, X + 3))
    a('v_min_u32 v%d, -2, v%d' % (U, U))
    a('v_min_u32 v%d, -2, v%d' % (U + 1, U + 1))
    a('s_mov_b64 exec, 0x00ff00ff')
    a('buffer_store_dwordx2 %s, v4, s[4:7], s45 offen sc1' % vr(U, 2))
    a('s_mov_b64 exec, -1')
    st2(a, opt, 6)
    a('s_branch k2_body')
    def h_loads():
        for s in range(14):
            a('buffer_load_dwordx4 %s, v%d, s[4:7], s50 offen offset:%d sc1' % (vr(X + 4 * s, 4), VHA, s * 64))
    a.label('k2_hook6')
    st2(a, opt, 3)
    if not opt.get('x_nobar6'):
        a('s_barrier')
    a('s_lshl_b32 s38, s24, 13')
    a('s_lshl_b32 s45, s28, 7')
    a('s_add_u32 s38, s38, s45')
    a('s_lshl_b32 s39, s24, 10')
    a('s_add_u32 s39, s39, %d' % WOL)
    a('v_lshrrev_b32 v4, 3, %s' % l)
    a('v_and_b32 v5, 7, %s' % l)
    a('v_lshlrev_b32 v5, 4, v5')
    a('v_lshl_add_u32 v%d, v4, 10, v5' % VXO)
    a('v_lshlrev_b32 v5, 2, %s' % l)
    a('v_and_b32 v5, 64, v5')
    a('v_xor_b32 v%d, v%d, v5' % (VD, VXO))
    a('s_mov_b64 s[96:97], s[20:21]')
    a('s_mov_b32 s98, s22')
    a('s_movk_i32 s100, 8192')
    a('s_mov_b32 s101, 65536')
    a('s_mov_b32 s94, 1')
    a('s_cmp_lt_u32 s26, 28')
    a('s_cselect_b32 s95, 8, 0')
    a('s_cbranch_scc1 k2_body')
    a('s_cmp_ge_u32 s24, 4')
    a('s_cbranch_scc1 k2_body')
    sel_wait(a)
    a('s_lshl_b32 s49, s25, 2')
    a('s_add_u32 s49, s49, s26')
    a('s_sub_u32 s49, s49, 28')
    a('v_and_b32 v6, 0x7ff, v%d' % VSEL)
    a('v_sub_u32 v6, 0x7ff, v6')
    a('v_and_b32 v5, 48, %s' % l)
    a('v_lshrrev_b32 v7, 1, v5')
    a('v_lshl_add_u32 v6, v6, 10, v7')
    a('s_lshl_b32 s46, s49, 5')
    a('s_add_u32 s46, s46, 0x%x' % XN)
    a('buffer_load_dwordx2 %s, v6, s[4:7], s46 offen' % vr(U, 2))
    a('s_movk_i32 s47, 896')
    a('v_mad_u32_u24 v%d, v%d, s47, v5' % (VHA, VSA))
    a('s_mul_i32 s50, s24, 896')
    a('s_add_u32 s50, s50, 0x%x' % HB)
    h_loads()
    a('s_branch k2_body')
    a.label('k2_hook7')
    st2(a, opt, 4)
    a('s_cmp_lt_u32 s26, 28')
    a('s_cbranch_scc1 k2_body')
    a('s_mov_b32 s95, 8')
    a('s_cmp_ge_u32 s24, 4')
    a('s_cbranch_scc1 k2_body')
    a('s_mov_b32 s48, 0')
    a.label('k2_b_poll')
    a('s_waitcnt vmcnt(0)')
    a('v_max_u32 v6, v%d, v%d' % (X, X + 2))
    for s in range(1, 14):
        a('v_max3_u32 v6, v%d, v%d, v6' % (X + 4 * s, X + 4 * s + 2))
    a('v_cmp_eq_u32 vcc, -1, v6')
    a('s_cbranch_vccz k2_b_go')
    h_loads()
    a('s_add_u32 s48, s48, 1')
    a('s_cmp_lt_u32 s48, 0x10000')
    a('s_cbranch_scc1 k2_b_poll')
    a('s_waitcnt vmcnt(0)')
    a.label('k2_b_go')
    st2(a, opt, 5)
    a('v_lshrrev_b32 v5, 4, %s' % l)
    a('v_bfe_u32 v6, %s, 2, 2' % l)
    a('v_lshl_add_u32 v6, v5, 3, v6')
    a('v_lshlrev_b32 v6, 5, v6')
    a('v_and_b32 v7, 3, %s' % l)
    a('v_lshl_add_u32 v6, v7, 3, v6')
    a('s_mul_i32 s46, s24, 14336')
    a('v_add_u32 v6, s46, v6')
    small_gemm(a, 14, 1024, 128)
    arrive('k2_body')
    a('v_xor_b32 v4, 0x80000000, v%d' % VSEL)
    a('v_ashrrev_i32 v6, 31, v4')
    a('v_and_b32 v6, 0x7fff0000, v6')
    a('v_xor_b32 v4, v4, v6')
    a('v_and_b32 v4, 0xffff0000, v4')
    a('v_mul_f32 v4, %s, v4' % f2u(NLOG2E))
    a('v_exp_f32 v4, v4')
    a('v_lshlrev_b32 v%d, 16, v%d' % (U + 4, U))
    a('v_add_f32 v4, 1.0, v4')
    a('v_and_b32 v%d, 0xffff0000, v%d' % (U + 5, U))
    a('v_rcp_f32 v4, v4')
    a('v_lshlrev_b32 v%d, 16, v%d' % (U + 6, U + 1))
    a('v_and_b32 v%d, 0xffff0000, v%d' % (U + 7, U + 1))
    bf16r(a, 'v4', 'v4')
    sum4()
    round4(X)
    for i in range(4):
        a('v_mul_f32 v%d, v%d, v4' % (X + i, X + i))
    round4(X)
    for i in range(4):
        a('v_add_f32 v%d, v%d, v%d' % (X + i, X + i, U + 4 + i))
    round4(X)
    silu4(a, X, U + 8)
    for i in range(4):
        a('v_min_u32 v%d, -2, v%d' % (X + i, X + i))
    a('v_lshlrev_b32 v7, 4, v5')
    a('v_lshl_add_u32 v6, v%d, 9, v7' % VSA)
    a('s_lshl_b32 s46, s49, 6')
    a('s_add_u32 s46, s46, 0x%x' % GSEL)
    a('s_mov_b32 exec_lo, 0x00ff00ff')
    a('s_mov_b32 exec_hi, 0x00ff00ff')
    a('buffer_store_dwordx4 %s, v6, s[4:7], s46 offen sc1' % vr(X, 4))
    a('s_mov_b64 exec, -1')
    st2(a, opt, 6)
    a('s_branch k2_body')
```

```python
from common import *

RED = 65536
RSTR = 272
K3_LDS = RED + 2 * 64 * RSTR

OFR = 16
ACC = 80
WF = 112
XR = 16
XNR = 24
G = 32
RD = 48
XF = 80
T = 96
VL = 8
K3_VGPR = 144


def gen_k3(a, opt):
    l = 'v%d' % VL
    groups = opt.get('k3groups', [4, 4, 4, 2, 2])
    assert sum(groups) == 16
    a('s_cmp_ge_u32 s2, 256')
    a('s_cbranch_scc1 k3_end')
    stamp(a, opt, 0)
    stamp_rt(a, opt, 10)
    a('s_load_dwordx2 s[4:5], s[0:1], 80')
    a('s_load_dwordx2 s[8:9], s[0:1], 16')
    a('s_load_dwordx2 s[12:13], s[0:1], 0')
    a('s_load_dwordx2 s[16:17], s[0:1], 64')
    a('v_lshrrev_b32 v1, 6, v0')
    a('v_and_b32 %s, 63, v0' % l)
    a('v_readfirstlane_b32 s23, v1')
    a('s_mov_b32 s6, 0x%x' % WS_USED)
    a('s_mov_b32 s7, 0x20000')
    a('s_mov_b32 s10, 0x80000')
    a('s_mov_b32 s11, 0x20000')
    a('s_and_b32 s25, s2, 7')
    a('s_lshr_b32 s26, s2, 3')
    a('s_and_b32 s27, s26, 3')
    a('s_lshl_b32 s25, s25, 2')
    a('s_add_u32 s27, s27, s25')
    a('s_lshr_b32 s28, s26, 2')
    a('s_lshl_b32 s33, s28, 7')
    a('v_lshrrev_b32 v2, 3, %s' % l)
    a('v_and_b32 v3, 7, %s' % l)
    a('v_lshlrev_b32 v4, 4, v3')
    a('v_lshl_add_u32 v4, v2, 10, v4')
    a('s_and_b32 s24, s23, 3')
    a('s_cmp_ge_u32 s23, 4')
    a('s_cbranch_scc1 k3_aux')
    a('s_and_b32 s29, s24, 1')
    a('s_lshr_b32 s30, s24, 1')
    a('v_lshlrev_b32 v5, 2, %s' % l)
    a('v_and_b32 v5, 64, v5')
    a('v_xor_b32 v5, v4, v5')
    a('v_lshlrev_b32 v6, 4, %s' % l)
    a('s_lshl_b32 s37, s27, 1')
    a('s_add_u32 s37, s37, s29')
    a('s_lshl_b32 s37, s37, 15')
    a('s_lshl_b32 s38, s30, 14')
    a('s_add_u32 s37, s37, s38')
    a('s_add_u32 s37, s37, 0x%x' % OF)
    a('s_lshl_b32 s38, s30, 18')
    a('s_lshl_b32 s39, s29, 13')
    a('s_add_u32 s38, s38, s39')
    a('s_add_u32 s38, s38, s33')
    a('s_lshl_b32 s39, s30, 15')
    a('s_lshl_b32 s40, s29, 10')
    a('s_add_u32 s39, s39, s40')
    if opt.get('k3rot', 1):
        a('s_lshl_b32 s40, s28, 11')
        a('s_or_b32 s37, s37, s40')
        a('s_lshl_b32 s40, s28, 15')
        a('s_or_b32 s38, s38, s40')
    a('s_waitcnt lgkmcnt(0)')

    def issue(i):
        a('s_xor_b32 s41, s37, %d' % (i << 10))
        a('s_add_u32 m0, s39, %d' % (i * 2048))
        a('s_xor_b32 s42, s38, %d' % (i << 14))
        a('buffer_load_dwordx4 %s, v6, s[4:7], s41 offen' % vr(OFR + 4 * i, 4))
        a('buffer_load_dwordx4 v5, s[8:11], s42 offen lds')
    ahead = opt.get('k3ahead', 8)
    for i in range(ahead):
        issue(i)
        if i == 1:
            a('v_lshrrev_b32 v9, 5, %s' % l)
            a('v_bfe_u32 v10, %s, 2, 2' % l)
            a('v_lshlrev_b32 v11, 9, v9')
            a('v_lshl_add_u32 v11, v10, 7, v11')
            a('v_and_b32 v12, 8, %s' % l)
            a('v_lshl_add_u32 v11, v12, 3, v11')
            a('v_and_b32 v12, 16, %s' % l)
            a('v_lshl_add_u32 v11, v12, 1, v11')
            a('v_and_b32 v12, 3, %s' % l)
            a('v_lshl_add_u32 v11, v12, 3, v11')
            a('v_lshl_add_u32 v11, s30, 15, v11')
            a('v_xor_b32 v12, 64, v11')
            a('v_and_b32 v13, 31, %s' % l)
            a('v_lshl_add_u32 v13, s29, 5, v13')
            a('s_movk_i32 s43, %d' % RSTR)
            a('v_mul_u32_u24 v13, s43, v13')
            a('v_lshl_add_u32 v13, v9, 4, v13')
            a('s_mul_i32 s43, s30, %d' % (64 * RSTR))
            a('s_add_u32 s43, s43, %d' % RED)
            a('v_add_u32 v13, s43, v13')
    stamp(a, opt, 1)
    issued = ahead
    done = 0
    for gi, n in enumerate(groups):
        a('s_waitcnt vmcnt(%d)' % (2 * (issued - done - n)))
        if gi == 0:
            stamp(a, opt, 7)
        a('s_barrier')
        stamp(a, opt, 2 + gi)
        steps = list(range(done, done + n))
        more = list(range(issued, min(16, issued + n)))

        def rd(i):
            for ct in range(2):
                for j4 in range(2):
                    a('ds_read_b64_tr_b16 %s, v%d offset:%d' % (vr(WF + (i & 3) * 8 + ct * 4 + j4 * 2, 2), 11 + ct, i * 2048 + j4 * 1024))
        pend = list(steps)
        for i in steps[:2]:
            rd(pend.pop(0))
        inflight = min(2, n)
        for k, i in enumerate(steps):
            if pend:
                rd(pend.pop(0))
                inflight += 1
            for ct in range(2):
                a('s_waitcnt lgkmcnt(%d)' % (4 * (inflight - 1) + (2 if ct == 0 else 0)))
                c = '0' if i == 0 else vr(ACC + 16 * ct, 16)
                a('v_mfma_f32_32x32x16_bf16 %s, %s, %s, %s' % (vr(ACC + 16 * ct, 16), vr(WF + (i & 3) * 8 + ct * 4, 4), vr(OFR + 4 * i, 4), c))
            inflight -= 1
            if more:
                issue(more.pop(0))
                issued += 1
        assert not more
        done += n
    for ct in range(2):
        for q in range(4):
            a('ds_write_b128 v13, %s offset:%d' % (vr(ACC + 16 * ct + 4 * q, 4), ct * 128 + q * 32))
    a('s_waitcnt lgkmcnt(0)')
    stamp(a, opt, 8)
    a('s_barrier')
    stamp(a, opt, 9)
    stamp_rt(a, opt, 11)
    stamp_flush(a, opt, 2, 's[4:7]', 's23', 8)
    a('s_endpgm')
    a.label('k3_aux')
    a('s_mov_b32 s14, 0x200000')
    a('s_mov_b32 s15, 0x20000')
    a('s_mov_b32 s18, 0x200000')
    a('s_mov_b32 s19, 0x20000')
    a('s_lshl_b32 s31, s27, 6')
    a('s_lshl_b32 s32, s24, 4')
    a('s_add_u32 s31, s31, s32')
    a('s_lshl_b32 s32, s31, 10')
    a('s_add_u32 s32, s32, s33')
    a('s_add_u32 s34, s32, 8192')
    a('s_add_u32 s35, s32, 0x%x' % XN)
    a('s_add_u32 s36, s34, 0x%x' % XN)
    a('s_waitcnt lgkmcnt(0)')
    stamp(a, opt, 5)
    a('s_add_u32 s52, s4, 0x%x' % SEL)
    a('s_addc_u32 s53, s5, 0')
    a('s_load_dwordx8 s[56:63], s[52:53], 0')
    a('buffer_load_dwordx4 %s, v4, s[4:7], s35 offen' % vr(XNR, 4))
    a('buffer_load_dwordx4 %s, v4, s[4:7], s36 offen' % vr(XNR + 4, 4))
    a('buffer_load_dwordx4 %s, v4, s[12:15], s32 offen' % vr(XR, 4))
    a('buffer_load_dwordx4 %s, v4, s[12:15], s34 offen' % vr(XR + 4, 4))
    a('s_movk_i32 s41, %d' % RSTR)
    a('v_lshl_add_u32 v14, s24, 4, v2')
    a('v_mul_u32_u24 v14, s41, v14')
    a('v_lshl_add_u32 v14, v3, 5, v14')
    a('v_add_u32 v14, %d, v14' % RED)
    a('s_sub_u32 s43, 0x7ff, s31')
    a('v_sub_u32 v15, s43, v2')
    a('s_mov_b64 s[44:45], 0')
    a('s_mov_b64 s[46:47], 0')
    a('v_mov_b32 v%d, 0' % T)
    a('v_mov_b32 v%d, 0' % (T + 1))
    a('s_waitcnt lgkmcnt(0)')
    stamp(a, opt, 6)
    for k in range(8):
        a('s_and_b32 s48, s%d, 0x7ff' % (56 + k))
        a('s_add_u32 s49, s48, 8')
        a('v_cmp_eq_u32 s[50:51], s48, v15')
        a('v_cmp_eq_u32 vcc, s49, v15')
        a('v_mov_b32 v%d, %d' % (T + 2, k * 2048))
        a('s_or_b64 s[44:45], s[44:45], s[50:51]')
        a('s_or_b64 s[46:47], s[46:47], vcc')
        a('v_cndmask_b32 v%d, v%d, v%d, s[50:51]' % (T, T, T + 2))
        a('v_cndmask_b32 v%d, v%d, v%d, vcc' % (T + 1, T + 1, T + 2))
    a('s_lshl_b32 s48, s28, 8')
    a('s_add_u32 s48, s48, 0x%x' % GSEL)
    stamp(a, opt, 1)
    parts = []
    parts.append(['s_waitcnt vmcnt(2)'] +
                 sum([['v_lshlrev_b32 v%d, 16, v%d' % (G + 2 * i, XNR + i), 'v_and_b32 v%d, 0xffff0000, v%d' % (G + 2 * i + 1, XNR + i)] for i in range(8)], []) +
                 ['v_mul_f32 v%d, %s, v%d' % (RD + i, f2u(NLOG2E), G + i) for i in range(16)] +
                 ['v_exp_f32 v%d, v%d' % (RD + i, RD + i) for i in range(16)])
    parts.append(['v_add_f32 v%d, 1.0, v%d' % (RD + i, RD + i) for i in range(16)] +
                 ['v_rcp_f32 v%d, v%d' % (RD + i, RD + i) for i in range(16)] +
                 ['v_mul_f32 v%d, v%d, v%d' % (G + i, G + i, RD + i) for i in range(16)])
    for gi in range(len(groups)):
        if gi == 0:
            a(parts[0][0])
            stamp(a, opt, 3)
            for x in parts[0][1:]:
                a(x)
            stamp(a, opt, 4)
        a('s_barrier')
        if gi == 0:
            for x in parts[1]:
                a(x)
            for p in range(2):
                lab = a.newlabel('k3_nosel')
                m = 's[44:45]' if p == 0 else 's[46:47]'
                a('v_lshl_add_u32 v%d, v3, 5, v%d' % (T + p, T + p))
                a('s_cmp_eq_u64 %s, 0' % m)
                a('s_cbranch_scc1 %s' % lab)
                a('s_mov_b64 exec, %s' % m)
                a('buffer_load_dwordx4 %s, v%d, s[4:7], s48 offen' % (vr(G + 8 * p, 4), T + p))
                a('buffer_load_dwordx4 %s, v%d, s[4:7], s48 offen offset:16' % (vr(G + 8 * p + 4, 4), T + p))
                a('s_mov_b64 exec, -1')
                a.label(lab)
            stamp(a, opt, 2)
        if gi == 1:
            a('s_waitcnt vmcnt(0)')
            for i in range(8):
                a('v_lshlrev_b32 v%d, 16, v%d' % (XF + 2 * i, XR + i))
                a('v_and_b32 v%d, 0xffff0000, v%d' % (XF + 2 * i + 1, XR + i))
    a('s_barrier')
    stamp(a, opt, 7)
    for p in range(2):
        for kh in range(2):
            for h in range(2):
                a('ds_read_b128 %s, v14 offset:%d' % (vr(RD + 16 * p + 8 * kh + 4 * h, 4), p * 8 * RSTR + kh * 64 * RSTR + h * 16))
    for p in range(2):
        a('s_waitcnt lgkmcnt(%d)' % (4 - 4 * p))
        for i in range(8):
            a('v_add_f32 v%d, v%d, v%d' % (RD + 16 * p + i, RD + 16 * p + i, RD + 16 * p + 8 + i))
        for i in range(8):
            a('v_fmac_f32 v%d, v%d, v%d' % (XF + 8 * p + i, RD + 16 * p + i, G + 8 * p + i))
        for i in range(4):
            a('v_cvt_pk_bf16_f32 v%d, v%d, v%d' % (T + 4 * p + i, XF + 8 * p + 2 * i, XF + 8 * p + 2 * i + 1))
        a('buffer_store_dwordx4 %s, v4, s[16:19], %s offen %s' % (vr(T + 4 * p, 4), 's32' if p == 0 else 's34', opt.get('k3st', '')))
    stamp(a, opt, 8)
    if opt.get('stamp'):
        a('s_waitcnt vmcnt(0)')
    stamp(a, opt, 9)
    stamp_rt(a, opt, 11)
    stamp_flush(a, opt, 2, 's[4:7]', 's23', 8)
    readout(a, opt, 's[4:7]', 's24')
    a.label('k3_end')
    a('s_endpgm')
```
